```python
import torch

def _softmax(x, axis=-1):
    return torch.softmax(x, dim=axis)
def _gelu(x):
    return torch.nn.functional.gelu(x, approximate="tanh")
def _silu(x):
    return torch.nn.functional.silu(x)
def _sigmoid(x):
    return torch.sigmoid(x)
def _layernorm(x, axis=-1, eps=1e-5):
    m = x.mean(dim=axis, keepdim=True)
    v = x.var(dim=axis, keepdim=True, unbiased=False)
    return (x - m) / torch.sqrt(v + eps)
def _scatter_add(tgt, idx, src, axis=0):
    return tgt.clone().index_add_(axis, idx, src)
def _segment_sum(src, seg, n):
    out = torch.zeros((n,) + src.shape[1:], dtype=src.dtype)
    return out.index_add_(0, seg, src)
def _pad(x, pw):
    flat = tuple(v for pair in reversed(pw) for v in pair)
    return torch.nn.functional.pad(x, flat)

kernel_name = 'gated_mix__linear_kernel_hedgehog__sliding_local_dilated__prompt'

def setup_inputs():

    _w = (lambda a: (lambda t: t.to(torch.bfloat16) if t.is_floating_point() else t)(torch.as_tensor(a)))
    def _A_setup():
        B, S, D, H = 1, 2048, 640, 32
        Dh = D // H
        return {
            "x": _w((lambda *s: torch.randn(*s, dtype=torch.bfloat16) * 0.05)(B, S, D)),
            "wqkv": _w((lambda *s: torch.randn(*s, dtype=torch.bfloat16) * 1.6)(D, 3 * D)),
            "w_phi": _w((lambda *s: torch.randn(*s, dtype=torch.bfloat16) * 1.6)(H, Dh, Dh) * (Dh ** -0.5)),
            "wo": _w((lambda *s: torch.randn(*s, dtype=torch.bfloat16) * 0.1)(D, D)),
        }
    _A_in = _A_setup()

    def _B_setup():
        B, S, D = 1, 2048, 640
        return {
            "x": _w((lambda *s: torch.randn(*s, dtype=torch.bfloat16) * 0.05)(B, S, D)),
            "wqkv": _w((lambda *s: torch.randn(*s, dtype=torch.bfloat16) * 0.8)(D, 3 * D)),
            "wo": _w((lambda *s: torch.randn(*s, dtype=torch.bfloat16) * 0.05)(D, D)),
        }
    _B_in = _B_setup()

    return {
        "A_x": _A_in["x"],
        "A_wqkv": _A_in["wqkv"],
        "A_w_phi": _A_in["w_phi"],
        "A_wo": _A_in["wo"],
        "B_x": _B_in["x"],
        "B_wqkv": _B_in["wqkv"],
        "B_wo": _B_in["wo"],
        "gate_w": _w((lambda *s: torch.randn(*s, dtype=torch.bfloat16) * 0.05)(640) * 16.0),
    }

def reference(A_x, A_wqkv, A_w_phi, A_wo, B_x, B_wqkv, B_wo, gate_w):
    def _A_ref(x, wqkv, w_phi, wo):
        B, S, D = x.shape
        H = 32; Dh = D // H
        qkv = (lambda x, *d: x.permute(*d))((x @ wqkv).reshape(B, S, 3, H, Dh), 2, 0, 3, 1, 4)
        q, k, v = qkv[0], qkv[1], qkv[2]
        pq = torch.einsum("bhsd,hdf->bhsf", q, w_phi)
        pk = torch.einsum("bhsd,hdf->bhsf", k, w_phi)
        phi_q = torch.concatenate([_softmax(pq, axis=-1), _softmax(-pq, axis=-1)], axis=-1)
        phi_k = torch.concatenate([_softmax(pk, axis=-1), _softmax(-pk, axis=-1)], axis=-1)
        kv = torch.einsum("bhsf,bhsd->bhfd", phi_k, v)
        z  = torch.einsum("bhsf->bhf", phi_k)
        num = torch.einsum("bhqf,bhfd->bhqd", phi_q, kv)
        den = torch.einsum("bhqf,bhf->bhq", phi_q, z)[..., None] + 1e-6
        o = num / den
        return (lambda x, *d: x.permute(*d))(o, 0, 2, 1, 3).reshape(B, S, D) @ wo

    def _B_ref(x, wqkv, wo):
        B, S, D = x.shape
        H = 32; Dh = D // H
        W, dil = 8, 2
        qkv = (lambda x, *d: x.permute(*d))((x @ wqkv).reshape(B, S, 3, H, Dh), 2, 0, 3, 1, 4)
        q, k, v = qkv[0], qkv[1], qkv[2]
        scale = Dh ** -0.5
        pos = torch.arange(S)
        off = torch.arange(W) * dil
        idx = pos[:, None] - off[None, :]
        mask = idx >= 0
        idx_c = torch.where(mask, idx, 0).reshape(-1)
        kg = k[:, :, idx_c, :].reshape(B, H, S, W, Dh)
        vg = v[:, :, idx_c, :].reshape(B, H, S, W, Dh)
        logits = torch.einsum("bhsd,bhswd->bhsw", q, kg) * scale
        logits = torch.where(mask[None, None, :, :], logits, -1e9)
        attn = _softmax(logits, axis=-1)
        o = torch.einsum("bhsw,bhswd->bhsd", attn, vg)
        return (lambda x, *d: x.permute(*d))(o, 0, 2, 1, 3).reshape(B, S, D) @ wo

    x = A_x
    g = _sigmoid((x * gate_w).sum(-1, keepdims=True))
    a = _A_ref(x, A_wqkv, A_w_phi, A_wo)
    b = _B_ref(x, B_wqkv, B_wo)
    return g * a + (1 - g) * b
```

```python
import re

TRANS = ("v_exp_f32", "v_log_f32", "v_rcp_f32", "v_rsq_f32", "v_sqrt_f32", "v_sin_f32", "v_cos_f32")
_tok = re.compile(r"(?<![\w.])([vas])(?:\[(\d+):(\d+)\]|(\d+))(?![\w])")

def regs_of(tok):
    out = []
    t = tok.strip()
    t = t.lstrip("-")
    if t.startswith("abs(") or t.startswith("|"):
        t = t.replace("abs(", "").replace(")", "").replace("|", "")
    if t in ("vcc", "exec", "m0", "scc"):
        return [t]
    if t in ("vcc_lo", "vcc_hi"):
        return ["vcc"]
    if t in ("exec_lo", "exec_hi"):
        return ["exec"]
    m = _tok.fullmatch(t)
    if m:
        c = m.group(1)
        if m.group(4) is not None:
            out.append(c + m.group(4))
        else:
            for i in range(int(m.group(2)), int(m.group(3)) + 1):
                out.append(c + str(i))
    return out

class Ins:
    __slots__ = ("op", "kind", "wr", "rd", "srcc", "states", "wide", "trans", "text", "mfma_d")

class Asm:
    def __init__(self):
        self.lines = []
        self.hist = []
        self.vm = []
        self.vm_known = 0
        self.n_ins = 0

    def raw(self, s):
        self.lines.append(s)

    def comment(self, s):
        self.lines.append("    ; " + s)

    def label(self, name):
        self.flush_hazards()
        self.lines.append(name + ":")

    def flush_hazards(self):
        need = 0
        d = 0
        for j in reversed(self.hist):
            if j.kind == "mfma":
                need = max(need, 8 - d)
            elif j.kind == "valu":
                need = max(need, 5 - d)
            elif j.kind == "salu":
                need = max(need, 1 - d)
            elif j.wide:
                need = max(need, 2 - d)
            d += j.states
            if d > 12:
                break
        if need > 0:
            self._nop(need)
        self.hist = []

    def _nop(self, n):
        while n > 0:
            k = min(n, 16)
            self.lines.append("    s_nop %d" % (k - 1))
            ins = Ins(); ins.op = "s_nop"; ins.kind = "nop"; ins.wr = set(); ins.rd = set(); ins.srcc = set()
            ins.states = k; ins.wide = False; ins.trans = False; ins.text = ""; ins.mfma_d = None
            self.hist.append(ins)
            n -= k

    def _classify(self, op, ops, text):
        ins = Ins()
        ins.op = op; ins.text = text; ins.states = 1; ins.wide = False; ins.trans = False
        ins.srcc = set(); ins.mfma_d = None
        R = [regs_of(o) for o in ops]
        flat = lambda l: [x for y in l for x in y]
        if op.startswith("v_mfma"):
            ins.kind = "mfma"
            ins.wr = set(R[0]); ins.rd = set(flat(R[1:3])); ins.srcc = set(R[3]) if len(R) > 3 else set()
            ins.mfma_d = tuple(R[0])
        elif op.startswith("v_"):
            ins.kind = "valu"
            ins.trans = op.replace("_e32", "").replace("_e64", "") in TRANS
            if op.startswith("v_permlane16_swap") or op.startswith("v_permlane32_swap"):
                ins.wr = set(flat(R[:2])); ins.rd = set(flat(R[:2]))
            elif op.startswith("v_cmp"):
                ins.wr = set(R[0]); ins.rd = set(flat(R[1:]))
            elif re.match(r"v_(add|sub|subrev)_co_u32", op):
                ins.wr = set(flat(R[:2])); ins.rd = set(flat(R[2:]))
            elif re.match(r"v_(addc|subb)_co_u32", op):
                ins.wr = set(flat(R[:2])); ins.rd = set(flat(R[2:]))
            elif op.startswith("v_fmac") or op.startswith("v_dot2c") or op.startswith("v_pk_fmac"):
                ins.wr = set(R[0]); ins.rd = set(flat(R))
            elif op.startswith("v_cndmask") and len(ops) == 3:
                ins.wr = set(R[0]); ins.rd = set(flat(R[1:])) | {"vcc"}
            else:
                ins.wr = set(R[0]); ins.rd = set(flat(R[1:]))
        elif op.startswith("buffer_load") or op.startswith("global_load"):
            ins.kind = "vmem"
            if " lds" in text or "_lds_" in op:
                ins.wr = set(); ins.rd = set(flat(R)) | {"m0"}
            else:
                ins.wr = set(R[0]); ins.rd = set(flat(R[1:]))
        elif op.startswith("buffer_store") or op.startswith("global_store") or "atomic" in op and not op.startswith("s_"):
            ins.kind = "vmem"
            ins.wr = set(); ins.rd = set(flat(R))
            ins.wide = op.endswith("x3") or op.endswith("x4")
        elif op.startswith("ds_read") or op.startswith("ds_bpermute") or op.startswith("ds_swizzle"):
            ins.kind = "ds"
            ins.wr = set(R[0]); ins.rd = set(flat(R[1:]))
        elif op.startswith("ds_"):
            ins.kind = "ds"
            ins.wr = set(); ins.rd = set(flat(R))
        elif op.startswith("s_"):
            ins.kind = "salu"
            if op in ("s_waitcnt", "s_barrier", "s_sleep", "s_setprio", "s_endpgm") or op.startswith("s_cbranch") or op == "s_branch":
                ins.wr = set(); ins.rd = set()
            elif op.startswith("s_cmp"):
                ins.wr = {"scc"}; ins.rd = set(flat(R))
            else:
                ins.wr = set(R[0]) if R else set(); ins.rd = set(flat(R[1:]))
                if "saveexec" in op:
                    ins.wr |= {"exec"}; ins.rd |= {"exec"}
        else:
            raise ValueError("unknown op " + op)
        return ins

    def _need(self, I):
        need = 0
        d = 0
        isv = lambda r: r[0] in "va" and r not in ("vcc",)
        for J in reversed(self.hist):
            n = 0
            if J.kind == "valu":
                wv = {r for r in J.wr if isv(r)}
                ws = {r for r in J.wr if not isv(r)}
                if I.kind == "mfma" and wv & (I.rd | I.srcc):
                    n = max(n, 2)
                if I.kind == "valu":
                    if J.trans and not I.trans and wv & I.rd:
                        n = max(n, 1)
                    if (I.op.startswith("v_readfirstlane") or I.op.startswith("v_readlane")) and wv & I.rd:
                        n = max(n, 1)
                    if I.op.startswith("v_permlane") and wv & I.rd:
                        n = max(n, 2)
                    if ("dpp" in I.text or "row_" in I.text) and wv & I.rd:
                        n = max(n, 2)
                    if ws & I.rd:
                        n = max(n, 4 if (I.op.startswith("v_readlane") or I.op.startswith("v_writelane")) else 2)
                if I.kind == "vmem" and ws & I.rd:
                    n = max(n, 5)
                if I.kind == "salu" and ws & I.rd:
                    n = max(n, 1)
            elif J.kind == "mfma":
                if I.kind == "mfma":
                    if J.wr & I.rd:
                        n = max(n, 8)
                    if J.wr & I.srcc:
                        if tuple(sorted(I.srcc)) != tuple(sorted(J.wr)):
                            n = max(n, 6)
                    if J.wr & I.wr and not (J.wr & I.srcc):
                        n = max(n, 6)
                else:
                    if J.wr & (I.rd | I.wr):
                        n = max(n, 8)
                    if I.kind == "valu" and J.srcc & I.wr:
                        n = max(n, 3)
            elif J.kind == "vmem":
                if J.wide and J.rd & I.wr and I.kind in ("valu", "vmem", "ds", "mfma"):
                    n = max(n, 2)
            elif J.kind == "salu":
                if "m0" in J.wr and "m0" in I.rd:
                    n = max(n, 1)
            need = max(need, n - d)
            d += J.states
            if d > 12:
                break
        return need

    def __call__(self, text, tag=None):
        text = text.strip()
        parts = text.split(None, 1)
        op = parts[0]
        rest = parts[1] if len(parts) > 1 else ""
        ops = []
        for o in rest.split(","):
            o = o.strip()
            if o:
                ops.append(o.split()[0])
        I = self._classify(op, ops, text)
        n = self._need(I)
        if n > 0:
            self._nop(n)
        self.lines.append("    " + text)
        self.hist.append(I)
        if len(self.hist) > 40:
            self.hist = self.hist[-30:]
        self.n_ins += 1
        if I.kind == "vmem":
            self.vm.append(tag)
        return I

    def wait_vm(self, tag, extra=""):
        idx = None
        for i in range(len(self.vm) - 1, -1, -1):
            if self.vm[i] == tag:
                idx = i
                break
        if idx is None:
            if extra:
                self("s_waitcnt " + extra)
            return
        n = len(self.vm) - 1 - idx
        n = min(n, 63)
        self(("s_waitcnt vmcnt(%d) " % n + extra).strip())
        self.vm = self.vm[idx + 1:]

    def wait_vm_all(self, extra=""):
        self(("s_waitcnt vmcnt(0) " + extra).strip())
        self.vm = []

    def text(self):
        return "\n".join(self.lines) + "\n"
```

```python
import sys
sys.path.insert(0, "tools")
from emit import Asm

NAME = "gated_mix__linear_kernel_hedgehog__sliding_local_dilated__prompt"
WS_KVT = 0
WS_G = 0x20000
WS_OA = 0x40000
WS_OB = 0x40000 + 0x280000
L2E = 0x3fb8aa3b
SCALE = 0x3e64f92e
MF = "v_mfma_f32_16x16x32_bf16"

RING = 0
SCR = 81920
WPHI = SCR
ZR = SCR + 3328
KVB = SCR + 5376
VFR = SCR + 13824
PHI = SCR + 34304
PHI_STRIDE = 352
HALO = SCR
EXC = SCR + 30720

def vr(b, n=4):
    return "v[%d:%d]" % (b, b + n - 1)
def ar(b, n=4):
    return "a[%d:%d]" % (b, b + n - 1)

def srd(a, d, lo, hi, size):
    a("s_mov_b32 s%d, s%d" % (d, lo))
    a("s_mov_b32 s%d, s%d" % (d + 1, hi))
    a("s_mov_b32 s%d, 0x%x" % (d + 2, size))
    a("s_mov_b32 s%d, 0x00020000" % (d + 3))

def load_kernargs(a):
    a("s_load_dwordx16 s[64:79], s[0:1], 0")
    a("s_load_dwordx4 s[80:83], s[0:1], 64")
    a("s_load_dwordx2 s[84:85], s[0:1], 80")

def dma_row_decode(a, vdst_p, vdst_cc, i5, vt):
    a("v_add_u32 v%d, %d, v1" % (vt, i5 * 64))
    a("v_mul_u32_u24 v%d, 0x199a, v%d" % (vdst_p, vt))
    a("v_lshrrev_b32 v%d, 16, v%d" % (vdst_p, vdst_p))
    a("v_mul_u32_u24 v%d, 10, v%d" % (vdst_cc, vdst_p))
    a("v_sub_u32 v%d, v%d, v%d" % (vdst_cc, vt, vdst_cc))

def xlane_reduce(a, op, v, t):
    a("v_mov_b32 v%d, v%d" % (t, v))
    a("v_permlane16_swap_b32 v%d, v%d" % (v, t))
    a("%s v%d, v%d, v%d" % (op, v, v, t))
    a("v_mov_b32 v%d, v%d" % (t, v))
    a("v_permlane32_swap_b32 v%d, v%d" % (v, t))
    a("%s v%d, v%d, v%d" % (op, v, v, t))

def poll(a, name, off, target):
    a("s_mov_b32 s29, 0x20000")
    a.label(name)
    a("buffer_load_dword v15, off, s[16:19], s30 offset:%d sc1" % off)
    a.wait_vm_all()
    a("v_readfirstlane_b32 s28, v15")
    a("s_cmp_ge_u32 s28, %d" % target)
    a("s_cbranch_scc1 %s_done" % name)
    a("s_sleep 2")
    a("s_sub_u32 s29, s29, 1")
    a("s_cmp_lg_u32 s29, 0")
    a("s_cbranch_scc1 %s" % name)
    a.label(name + "_done")

def k1_dma_unit(a, n):
    buf = n % 4
    if n < 10:
        a("s_add_u32 s28, s24, 0x%x" % (n * 245760))
    else:
        a("s_add_u32 s28, s25, 0x%x" % ((n - 10) * 491520))
    for i5 in range(5):
        a("s_add_u32 m0, s26, %d" % (buf * 20480 + i5 * 1024))
        a("buffer_load_dwordx4 v%d, s[8:11], s28 offen lds" % (5 + i5), tag=("dma", n))

def k1_reads(ks, pas, br):
    out = []
    if pas == 1:
        u = ks >> 1; aa = ks & 1; buf = u % 4
        st = ks & 1
        for j in range(10):
            seg = 0 if j < 5 else 1
            t = j % 5
            img = buf * 20480 + (aa * 2 + seg) * 5120
            blk = (seg == 0 and br == 0)
            base = (12 if blk else 10) + (1 if buf >= 2 else 0)
            if buf >= 2: img -= 40960
            co = 8 * t if blk else 32 * t
            f = 16 + st * 40 + j * 4
            for h in range(2):
                out.append("ds_read_b64_tr_b16 %s, v%d offset:%d" % (vr(f + 2 * h, 2), base, img + h * 2560 + co))
    else:
        u = 10 + (ks >> 2); aa = ks & 3; buf = u % 4
        st = ks & 1
        for t in range(5):
            img = buf * 20480 + aa * 5120
            blk = (br == 0)
            base = (12 if blk else 10) + (1 if buf >= 2 else 0)
            if buf >= 2: img -= 40960
            co = 8 * t if blk else 32 * t
            f = 16 + st * 20 + t * 4
            for h in range(2):
                out.append("ds_read_b64_tr_b16 %s, v%d offset:%d" % (vr(f + 2 * h, 2), base, img + h * 2560 + co))
    return out

KA = 96; VA = 136; QA = 96; HA = 216

def k1_mfmas(ks, pas):
    out = []
    st = ks & 1
    if pas == 1:
        for j in range(10):
            t = j % 5
            f = vr(16 + st * 40 + j * 4)
            for P in range(2):
                x = ar((ks * 2 + P) * 4)
                if j < 5:
                    acc = vr(KA + (P * 5 + t) * 4)
                    out.append("%s %s, %s, %s, %s" % (MF, acc, f, x, "0" if ks == 0 else acc))
                else:
                    acc = vr(VA + (P * 5 + t) * 4)
                    out.append("%s %s, %s, %s, %s" % (MF, acc, x, f, "0" if ks == 0 else acc))
    else:
        for t in range(5):
            f = vr(16 + st * 20 + t * 4)
            for P in range(2):
                x = ar((ks * 2 + P) * 4)
                acc = vr(QA + (P * 5 + t) * 4)
                out.append("%s %s, %s, %s, %s" % (MF, acc, f, x, "0" if ks == 0 else acc))
    return out

def interleave(a, mf, rd):
    n = len(mf); m = len(rd); k = 0
    for i, x in enumerate(mf):
        a(x)
        want = (i + 1) * m // n
        while k < want:
            a(rd[k]); k += 1
    while k < m:
        a(rd[k]); k += 1

def k1_pass(a, pas, br, hook=None):
    per = 2 if pas == 1 else 4
    ubase = 0 if pas == 1 else 10
    for ks in range(20):
        a("s_waitcnt lgkmcnt(0)")
        a.wait_vm(("x", ks))
        nxt = ks + 1
        rd = []
        if nxt < 20:
            if nxt % per == 0:
                un = ubase + nxt // per
                a.wait_vm(("dma", un))
                a("s_barrier")
                if un + 3 < 15:
                    k1_dma_unit(a, un + 3)
                if hook: hook(un)
            rd = k1_reads(nxt, pas, br)
        interleave(a, k1_mfmas(ks, pas), rd)
        if pas == 1 and br == 1:
            a("s_cmp_eq_u32 s27, %d" % (ks & 3))
            a("s_cbranch_scc0 L_h%d" % ks)
            a.wait_vm(("xh", ks >> 2))
            st = ks & 1
            for j in range(10):
                f = vr(16 + st * 40 + j * 4)
                x = ar(160 + (ks >> 2) * 4)
                acc = vr(HA + j * 4)
                if j < 5:
                    a("%s %s, %s, %s, %s" % (MF, acc, f, x, acc))
                else:
                    a("%s %s, %s, %s, %s" % (MF, acc, x, f, acc))
            a.label("L_h%d" % ks)

def enter_pass2(a, br):
    a.wait_vm(("dma", 10))
    a("s_barrier")
    k1_dma_unit(a, 13)
    for r in k1_reads(0, 2, br):
        a(r)

WF = 176

def load_wphi_frags(a):
    for tp in range(5):
        for c in range(3):
            f = WF + (tp * 3 + c) * 4
            a("ds_read_b64_tr_b16 %s, v14 offset:%d" % (vr(f, 2), (8 * c) * 40 + 8 * tp))
            if c < 2:
                a("ds_read_b64_tr_b16 %s, v14 offset:%d" % (vr(f + 2, 2), (8 * c + 4) * 40 + 8 * tp))
            else:
                a("v_mov_b32 v%d, 0" % (f + 2))
                a("v_mov_b32 v%d, 0" % (f + 3))

def phi_stage(a, acc, out, T):
    kp = T; pk = T + 12; em = T + 32; tmp = T + 52
    for t in range(5):
        a("v_cvt_pk_bf16_f32 v%d, v%d, v%d" % (kp + 2 * t, acc + 4 * t, acc + 4 * t + 1))
        a("v_cvt_pk_bf16_f32 v%d, v%d, v%d" % (kp + 2 * t + 1, acc + 4 * t + 2, acc + 4 * t + 3))
    a("v_mov_b32 v%d, 0" % (kp + 10))
    a("v_mov_b32 v%d, 0" % (kp + 11))
    for c in range(3):
        for tp in range(5):
            d = vr(pk + 4 * tp)
            a("%s %s, %s, %s, %s" % (MF, d, vr(WF + (tp * 3 + c) * 4), vr(kp + 4 * c), "0" if c == 0 else d))
    for m in range(10):
        a("v_cvt_pk_bf16_f32 v%d, v%d, v%d" % (kp + m, pk + 2 * m, pk + 2 * m + 1))
    for m in range(10):
        a("v_lshlrev_b32 v%d, 16, v%d" % (pk + 2 * m, kp + m))
        a("v_and_b32 v%d, 0xffff0000, v%d" % (pk + 2 * m + 1, kp + m))
    mx = tmp; mn = tmp + 1; s1 = tmp + 2; s2 = tmp + 3
    a("v_max3_f32 v%d, v%d, v%d, v%d" % (mx, pk, pk + 1, pk + 2))
    a("v_min3_f32 v%d, v%d, v%d, v%d" % (mn, pk, pk + 1, pk + 2))
    for m in range(3, 19, 2):
        a("v_max3_f32 v%d, v%d, v%d, v%d" % (mx, mx, pk + m, pk + m + 1))
        a("v_min3_f32 v%d, v%d, v%d, v%d" % (mn, mn, pk + m, pk + m + 1))
    a("v_max_f32 v%d, v%d, v%d" % (mx, mx, pk + 19))
    a("v_min_f32 v%d, v%d, v%d" % (mn, mn, pk + 19))
    a("v_mul_f32 v%d, s31, v%d" % (mx, mx))
    a("v_mul_f32 v%d, s31, v%d" % (mn, mn))
    for m in range(20):
        a("v_fma_f32 v%d, -v%d, s31, v%d" % (em + m, pk + m, mn))
        a("v_fma_f32 v%d, v%d, s31, -v%d" % (pk + m, pk + m, mx))
    for m in range(20):
        a("v_exp_f32 v%d, v%d" % (pk + m, pk + m))
        a("v_exp_f32 v%d, v%d" % (em + m, em + m))
    a("v_add_f32 v%d, v%d, v%d" % (s1, pk, pk + 1))
    a("v_add_f32 v%d, v%d, v%d" % (s2, em, em + 1))
    for m in range(2, 20):
        a("v_add_f32 v%d, v%d, v%d" % (s1, s1, pk + m))
        a("v_add_f32 v%d, v%d, v%d" % (s2, s2, em + m))
    a("v_rcp_f32 v%d, v%d" % (s1, s1))
    a("v_rcp_f32 v%d, v%d" % (s2, s2))
    for m in range(20):
        a("v_mul_f32 v%d, v%d, v%d" % (pk + m, pk + m, s1))
        a("v_mul_f32 v%d, v%d, v%d" % (em + m, em + m, s2))
    for m in range(10):
        a("v_cvt_pk_bf16_f32 v%d, v%d, v%d" % (out + m, pk + 2 * m, pk + 2 * m + 1))
        a("v_cvt_pk_bf16_f32 v%d, v%d, v%d" % (out + 10 + m, em + 2 * m, em + 2 * m + 1))

def store_frag(a, op, P):
    a("buffer_store_dwordx4 %s, v15, s[12:15], s22 offen offset:%d" % (vr(op), 0), tag="st")
    a("buffer_store_dwordx4 %s, v15, s[12:15], s22 offen offset:%d" % (vr(op + 4), 1024), tag="st")
    a("buffer_store_dwordx2 %s, v15, s[12:15], s23 offen" % (vr(op + 8, 2)), tag="st")
    if P == 0:
        a("s_add_u32 s22, s22, 20480")
        a("s_add_u32 s23, s23, 20480")

def frag_store_setup(a, wsoff):
    a("s_lshl_b32 s22, s20, 3")
    a("s_lshl_b32 s28, s27, 1")
    a("s_add_u32 s22, s22, s28")
    a("s_mul_i32 s22, s22, 20480")
    a("s_add_u32 s22, s22, 0x%x" % wsoff)
    a("s_lshr_b32 s28, s21, 1")
    a("s_mul_i32 s28, s28, 5120")
    a("s_add_u32 s22, s22, s28")
    a("s_add_u32 s23, s22, 2048")
    a("s_and_b32 s28, s21, 1")
    a("s_mul_i32 s29, s28, 3072")
    a("s_add_u32 s22, s22, s29")
    a("s_lshl_b32 s28, s28, 3")
    a("s_add_u32 s23, s23, s28")
    a("v_lshlrev_b32 v15, 4, v1")

def gen_k1(a):
    a.raw(".globl k1_kernel\n.p2align 8\n.type k1_kernel,@function\nk1_kernel:")
    a("s_cmp_ge_u32 s2, 256")
    a("s_cbranch_scc1 L_k1_end")
    load_kernargs(a)
    a("s_and_b32 s28, s2, 7")
    a("s_lshr_b32 s29, s2, 3")
    a("s_lshr_b32 s20, s28, 2")
    a("s_lshl_b32 s20, s20, 3")
    a("s_lshr_b32 s30, s29, 2")
    a("s_add_u32 s20, s20, s30")
    a("s_and_b32 s21, s28, 3")
    a("s_lshl_b32 s21, s21, 2")
    a("s_and_b32 s30, s29, 3")
    a("s_add_u32 s21, s21, s30")
    a("s_lshr_b32 s3, s21, 3")
    a("s_and_b32 s21, s21, 7")
    a("v_and_b32 v1, 63, v0")
    a("v_lshrrev_b32 v2, 6, v0")
    a("v_readfirstlane_b32 s27, v2")
    a("v_lshrrev_b32 v2, 4, v1")
    a("v_and_b32 v3, 15, v1")
    a("s_waitcnt lgkmcnt(0)")
    srd(a, 4, 64, 65, 2621440)
    a("s_cmp_eq_u32 s3, 0")
    a("s_cselect_b32 s8, s66, s74")
    a("s_cselect_b32 s9, s67, s75")
    a("s_mov_b32 s10, 2457600")
    a("s_mov_b32 s11, 0x00020000")
    srd(a, 12, 84, 85, 0x10000000)
    srd(a, 16, 82, 83, 256)
    a("s_lshl_b32 s28, s20, 7")
    a("s_lshl_b32 s29, s27, 5")
    a("s_add_u32 s28, s28, s29")
    a("v_add_u32 v4, s28, v3")
    a("v_mul_u32_u24 v4, 1280, v4")
    a("v_lshlrev_b32 v14, 4, v2")
    a("v_add_u32 v4, v4, v14")
    a("s_lshr_b32 s28, s27, 1")
    a("s_mul_i32 s24, s28, 122880")
    a("s_and_b32 s28, s27, 1")
    a("s_add_u32 s28, s28, 1")
    a("s_mul_i32 s28, s28, 1280")
    a("s_add_u32 s24, s24, s28")
    a("s_mul_i32 s28, s21, 160")
    a("s_add_u32 s24, s24, s28")
    a("s_mul_i32 s25, s27, 122880")
    a("s_add_u32 s25, s25, s28")
    a("s_mul_i32 s26, s27, 5120")
    for i5 in range(5):
        dma_row_decode(a, 14, 15, i5, 16)
        a("v_lshrrev_b32 v16, 4, v14")
        a("v_bfe_u32 v17, v14, 2, 2")
        a("v_and_b32 v18, 3, v14")
        a("v_lshlrev_b32 v17, 3, v17")
        a("v_lshl_add_u32 v17, v16, 2, v17")
        a("v_add_u32 v17, v17, v18")
        a("v_mul_u32_u24 v17, 3840, v17")
        a("v_lshl_add_u32 v%d, v15, 4, v17" % (5 + i5))
    a("s_mov_b32 s30, 20480")
    def xloads(lo, hi):
        for ks in range(lo, hi):
            a("buffer_load_dwordx4 %s, v4, s[4:7], 0 offen offset:%d" % (ar((ks * 2) * 4), ks * 64), tag=("x", ks))
            a("buffer_load_dwordx4 %s, v4, s[4:7], s30 offen offset:%d" % (ar((ks * 2 + 1) * 4), ks * 64), tag=("x", ks))
    k1_dma_unit(a, 0)
    xloads(0, 2)
    k1_dma_unit(a, 1)
    xloads(2, 4)
    k1_dma_unit(a, 2)
    xloads(4, 6)
    k1_dma_unit(a, 3)
    xloads(6, 20)
    a("v_lshrrev_b32 v14, 2, v3")
    a("v_and_b32 v15, 3, v3")
    a("v_lshl_add_u32 v14, v2, 2, v14")
    a("v_mul_u32_u24 v14, 160, v14")
    a("v_lshl_add_u32 v10, v15, 3, v14")
    a("v_add_u32 v11, 40960, v10")
    a("v_mul_u32_u24 v15, 40, v15")
    a("v_add_u32 v12, v14, v15")
    a("v_add_u32 v13, 40960, v12")
    a("s_mov_b32 s31, 0x%x" % L2E)
    a("s_mov_b32 s30, 0")
    a("s_cmp_eq_u32 s3, 0")
    a("s_cbranch_scc0 L_k1_B")
    vm_snapshot = list(a.vm)

    a("s_cmp_lg_u32 s27, 0")
    a("s_cbranch_scc1 L_a_nz")
    a("v_mov_b32 v16, 0"); a("v_mov_b32 v17, 0"); a("v_mov_b32 v18, 0"); a("v_mov_b32 v19, 0")
    a("v_lshlrev_b32 v15, 4, v1")
    a("s_lshl_b32 s28, s21, 14")
    a("s_lshl_b32 s29, s20, 10")
    a("s_add_u32 s28, s28, s29")
    a("buffer_store_dwordx4 v[16:19], v15, s[12:15], s28 offen sc0 sc1")
    a.vm.pop()
    a("s_waitcnt vmcnt(0)")
    a("v_mov_b32 v16, 1")
    a("v_mov_b32 v15, 0")
    a("s_lshl_b32 s28, s21, 2")
    a("s_mov_b64 exec, 1")
    a("buffer_atomic_add v16, v15, s[16:19], s28 offen")
    a.vm.pop()
    a("s_mov_b64 exec, -1")
    a.label("L_a_nz")
    srd(a, 32, 68, 69, 25600)
    a("s_mul_i32 s28, s21, 3200")
    a("v_lshlrev_b32 v15, 4, v0")
    a("buffer_load_dwordx4 v[16:19], v15, s[32:35], s28 offen", tag="wphi")
    a("v_mov_b32 v20, 0"); a("v_mov_b32 v21, 0"); a("v_mov_b32 v22, 0"); a("v_mov_b32 v23, 0")
    a("v_add_u32 v24, %d, v15" % ZR)
    a("v_cmp_gt_u32 vcc, 128, v0")
    a("s_and_saveexec_b64 s[28:29], vcc")
    a("ds_write_b128 v24, v[20:23]")
    a("s_mov_b64 exec, s[28:29]")
    a.wait_vm("wphi")
    a("v_add_u32 v24, %d, v15" % WPHI)
    a("v_cmp_gt_u32 vcc, 200, v0")
    a("s_and_saveexec_b64 s[28:29], vcc")
    a("ds_write_b128 v24, v[16:19]")
    a("s_mov_b64 exec, s[28:29]")
    a("v_lshrrev_b32 v16, 2, v3")
    a("v_and_b32 v17, 3, v3")
    a("v_mul_u32_u24 v18, 800, v2")
    a("v_mul_u32_u24 v16, 40, v16")
    a("v_add3_u32 v18, v18, v16, v16")
    a("v_sub_u32 v18, v18, v16")
    a("v_add_u32 v18, %d, v18" % WPHI)
    a("v_mov_b32 v19, %d" % ZR)
    a("v_cmp_eq_u32 vcc, v17, v2")
    a("v_cndmask_b32 v14, v19, v18, vcc")
    a.wait_vm(("dma", 0), "lgkmcnt(0)")
    a("s_barrier")
    for r in k1_reads(0, 1, 0):
        a(r)
    k1_pass(a, 1, 0)
    load_wphi_frags(a)
    a("v_lshlrev_b32 v15, 4, v1")
    a("s_mul_i32 s28, s27, 5120")
    a("s_add_u32 s28, s28, %d" % VFR)
    a("v_add_u32 v15, s28, v15")
    for t in range(5):
        for P in range(2):
            b = VA + (P * 5 + t) * 4
            a("v_cvt_pk_bf16_f32 v%d, v%d, v%d" % (16 + t * 4 + 2 * P, b, b + 1))
            a("v_cvt_pk_bf16_f32 v%d, v%d, v%d" % (16 + t * 4 + 2 * P + 1, b + 2, b + 3))
        a("ds_write_b128 v15, %s offset:%d" % (vr(16 + t * 4), t * 1024))
    a("s_waitcnt lgkmcnt(0)")
    a("s_lshl_b32 s28, s27, 5")
    a("v_add_u32 v15, s28, v3")
    a("v_mul_u32_u24 v15, %d, v15" % PHI_STRIDE)
    a("v_mul_u32_u24 v16, 80, v2")
    a("v_add3_u32 v15, v15, v16, v16")
    a("v_sub_u32 v15, v15, v16")
    a("v_add_u32 v15, %d, v15" % PHI)
    for P in range(2):
        phi_stage(a, KA + P * 20, 136 + P * 20, 16 + 0)
        for c in range(5):
            a("ds_write_b128 v15, %s offset:%d" % (vr(136 + P * 20 + 4 * c), P * 16 * PHI_STRIDE + 16 * c))
    a("s_waitcnt lgkmcnt(0)")
    a("s_barrier")
    a("v_lshrrev_b32 v16, 2, v3")
    a("v_and_b32 v17, 3, v3")
    a("v_lshl_add_u32 v16, v2, 2, v16")
    a("v_mul_u32_u24 v16, %d, v16" % PHI_STRIDE)
    a("v_lshl_add_u32 v16, v17, 3, v16")
    a("s_mul_i32 s28, s27, 80")
    a("s_add_u32 s28, s28, %d" % PHI)
    a("v_add_u32 v16, s28, v16")
    a("v_lshlrev_b32 v17, 4, v1")
    a("s_lshl_b32 s28, s27, 10")
    a("s_add_u32 s28, s28, %d" % VFR)
    a("v_add_u32 v17, s28, v17")
    for q in range(4):
        a("v_mov_b32 v%d, 0x3f803f80" % (20 + q))
    KVA = 96
    for s4 in range(4):
        pf = 24 + (s4 & 1) * 20
        for ft in range(3):
            for h in range(2):
                a("ds_read_b64_tr_b16 %s, v16 offset:%d" % (vr(pf + ft * 4 + 2 * h, 2), (s4 * 32 + h * 16) * PHI_STRIDE + 32 * ft))
        for tt in range(2):
            a("ds_read_b128 %s, v17 offset:%d" % (vr(pf + 12 + tt * 4), s4 * 5120 + tt * 1024))
        a("s_waitcnt lgkmcnt(0)")
        for ft in range(3):
            for tt in range(3):
                d = vr(KVA + (ft * 3 + tt) * 4)
                A_ = vr(pf + 12 + tt * 4) if tt < 2 else vr(20)
                a("%s %s, %s, %s, %s" % (MF, d, A_, vr(pf + ft * 4), "0" if s4 == 0 else d))
    poll(a, "L_pz", 0, 16) if False else None
    a("s_lshl_b32 s30, s21, 2")
    poll(a, "L_pz", 0, 16)
    a("v_mul_u32_u24 v15, 640, v2")
    a("v_lshl_add_u32 v15, v3, 2, v15")
    a("s_lshl_b32 s28, s21, 14")
    a("s_mul_i32 s29, s27, 2720")
    a("s_add_u32 s28, s28, s29")
    a("v_cmp_ge_u32 s[32:33], v2, s27")
    a("v_cmp_le_u32 s[34:35], v2, s27")
    a("v_cmp_gt_u32 s[36:37], 8, v3")
    a("s_and_b64 s[38:39], s[32:33], s[36:37]")
    a("s_and_b64 s[40:41], s[34:35], s[36:37]")
    for tt in range(2):
        for ft in range(3):
            msk = (32 if tt == 0 else 34) if ft < 2 else (38 if tt == 0 else 40)
            a("s_mov_b64 exec, s[%d:%d]" % (msk, msk + 1))
            for r in range(4):
                a("buffer_atomic_add_f32 v%d, v15, s[12:15], s28 offen offset:%d" %
                  (KVA + (ft * 3 + tt) * 4 + r, tt * 2560 + r * 160 + ft * 64), tag="atom")
    a("s_lshl_b32 s28, s21, 14")
    a("s_mul_i32 s29, s27, 3360")
    a("s_add_u32 s28, s28, s29")
    for ft in range(3):
        a("s_mov_b64 exec, 0x%x" % (0xffff if ft < 2 else 0xff))
        a("buffer_atomic_add_f32 v%d, v15, s[12:15], s28 offen offset:%d" % (KVA + (ft * 3 + 2) * 4, 3200 + ft * 64), tag="atom")
    a("s_mov_b64 exec, -1")
    def hookA(un):
        if un == 12:
            a("s_cmp_lg_u32 s27, 0")
            a("s_cbranch_scc1 L_a_ns")
            a("v_mov_b32 v240, 1")
            a("v_mov_b32 v241, 0")
            a("s_lshl_b32 s28, s21, 2")
            a("s_mov_b64 exec, 1")
            a("buffer_atomic_add v240, v241, s[16:19], s28 offen offset:32")
            a.vm.pop()
            a("s_mov_b64 exec, -1")
            a.label("L_a_ns")
    enter_pass2(a, 0)
    orig_wait = a.wait_vm
    def wait_vm2(tag, extra=""):
        if tag == ("dma", 12):
            orig_wait("atom")
        return orig_wait(tag, extra)
    a.wait_vm = wait_vm2
    k1_pass(a, 2, 0, hookA)
    a.wait_vm = orig_wait
    PQ = 136
    for P in range(2):
        phi_stage(a, QA + P * 20, PQ + P * 20, 16)
    a("s_lshl_b32 s30, s21, 2")
    poll(a, "L_pc", 32, 16)
    a("v_lshlrev_b32 v15, 4, v0")
    a("s_lshl_b32 s28, s21, 14")
    for q in range(4):
        a("buffer_load_dwordx4 %s, v15, s[12:15], s28 offen offset:%d sc1" % (vr(16 + 4 * q), 0) if q == 0 else
          "buffer_load_dwordx4 %s, v15, s[12:15], s28 offen sc1" % vr(16 + 4 * q), tag="kv")
        a("s_add_u32 s28, s28, 4096")
    a("v_lshlrev_b32 v15, 3, v0")
    a("v_add_u32 v15, %d, v15" % KVB)
    a.wait_vm("kv")
    for q in range(4):
        a("v_cvt_pk_bf16_f32 v%d, v%d, v%d" % (32 + 2 * q, 16 + 4 * q, 17 + 4 * q))
        a("v_cvt_pk_bf16_f32 v%d, v%d, v%d" % (33 + 2 * q, 18 + 4 * q, 19 + 4 * q))
        a("ds_write_b64 v15, %s offset:%d" % (vr(32 + 2 * q, 2), q * 2048))
    a("v_lshrrev_b32 v16, 2, v3")
    a("v_and_b32 v17, 3, v3")
    a("v_mul_u32_u24 v18, 21, v2")
    a("v_add_u32 v19, v18, v17")
    a("v_mul_u32_u24 v19, 80, v19")
    a("v_add_u32 v19, %d, v19" % KVB)
    a("v_mul_u32_u24 v18, 80, v18")
    a("v_add_u32 v18, %d, v18" % (KVB + 1600))
    a("v_mov_b32 v20, %d" % ZR)
    a("v_cmp_eq_u32 vcc, v16, v2")
    a("v_cndmask_b32 v16, v20, v19, vcc")
    a("v_cndmask_b32 v17, v20, v18, vcc")
    a("s_waitcnt lgkmcnt(0)")
    a("s_barrier")
    NUM = 40
    for t in range(6):
        fb = 176 + (t & 1) * 20
        for c in range(5):
            if t < 5:
                a("ds_read_b128 %s, v16 offset:%d" % (vr(fb + 4 * c), 320 * t + 16 * c))
            else:
                a("ds_read_b128 %s, v17 offset:%d" % (vr(fb + 4 * c), 16 * c))
        a("s_waitcnt lgkmcnt(0)")
        for c in range(5):
            for P in range(2):
                d = vr(NUM + (P * 6 + t) * 4)
                a("%s %s, %s, %s, %s" % (MF, d, vr(fb + 4 * c), vr(PQ + P * 20 + 4 * c), "0" if c == 0 else d))
    frag_store_setup(a, WS_OA)
    for P in range(2):
        nb = NUM + P * 24
        dn = nb + 20
        a("v_cvt_pk_bf16_f32 v%d, v%d, v%d" % (dn, dn, dn))
        a("v_lshlrev_b32 v%d, 16, v%d" % (dn, dn))
        a("v_add_f32 v%d, 0x358637bd, v%d" % (dn, dn))
        a("v_cvt_pk_bf16_f32 v%d, v%d, v%d" % (dn, dn, dn))
        a("v_lshlrev_b32 v%d, 16, v%d" % (dn, dn))
        a("v_rcp_f32 v%d, v%d" % (dn, dn))
        op = 100 + P * 12
        for m in range(10):
            a("v_cvt_pk_bf16_f32 v%d, v%d, v%d" % (op + m, nb + 2 * m, nb + 2 * m + 1))
        for m in range(10):
            a("v_lshlrev_b32 v%d, 16, v%d" % (nb + 2 * m, op + m))
            a("v_and_b32 v%d, 0xffff0000, v%d" % (nb + 2 * m + 1, op + m))
        for m in range(20):
            a("v_mul_f32 v%d, v%d, v%d" % (nb + m, nb + m, dn))
        for m in range(10):
            a("v_cvt_pk_bf16_f32 v%d, v%d, v%d" % (op + m, nb + 2 * m, nb + 2 * m + 1))
        store_frag(a, op, P)
    a("s_endpgm")

    a.label("L_k1_B")
    a.vm = list(vm_snapshot)
    a("s_lshl_b32 s28, s20, 7")
    a("s_sub_u32 s28, s28, 16")
    a("v_add_u32 v14, s28, v3")
    a("v_mul_i32_i24 v14, 1280, v14")
    a("v_lshl_add_u32 v14, v2, 4, v14")
    a("s_lshl_b32 s28, s27, 6")
    for q in range(5):
        a("buffer_load_dwordx4 %s, v14, s[4:7], s28 offen offset:%d" % (ar(160 + 4 * q), q * 256), tag=("xh", q))
    for q in range(40):
        a("v_mov_b32 v%d, 0" % (HA + q))
    srd(a, 32, 78, 79, 1280)
    a("v_lshrrev_b32 v14, 4, v0")
    a("s_lshl_b32 s28, s20, 7")
    a("s_lshl_b32 s29, s21, 4")
    a("s_add_u32 s28, s28, s29")
    a("v_add_u32 v14, s28, v14")
    a("v_mul_u32_u24 v15, 1280, v14")
    a("v_lshl_add_u32 v15, v3, 4, v15")
    a("v_lshlrev_b32 v16, 4, v3")
    for c in range(5):
        a("buffer_load_dwordx4 %s, v15, s[4:7], 0 offen offset:%d" % (vr(20 + 4 * c), 256 * c), tag="gx")
        a("buffer_load_dwordx4 %s, v16, s[32:35], 0 offen offset:%d" % (vr(40 + 4 * c), 256 * c), tag="gx")
    a.wait_vm("gx")
    a("v_mov_b32 v60, 0")
    a("v_mov_b32 v61, 0")
    for m in range(20):
        a("v_lshlrev_b32 v62, 16, v%d" % (20 + m))
        a("v_and_b32 v63, 0xffff0000, v%d" % (20 + m))
        a("v_lshlrev_b32 v64, 16, v%d" % (40 + m))
        a("v_and_b32 v65, 0xffff0000, v%d" % (40 + m))
        a("v_mul_f32 v62, v62, v64")
        a("v_mul_f32 v63, v63, v65")
        a("v_cvt_pk_bf16_f32 v62, v62, v63")
        a("v_lshlrev_b32 v63, 16, v62")
        a("v_and_b32 v62, 0xffff0000, v62")
        a("v_add_f32 v60, v60, v63")
        a("v_add_f32 v61, v61, v62")
    a("v_add_f32 v60, v60, v61")
    for sh in (8, 4, 2, 1):
        a("v_add_f32_dpp v60, v60, v60 row_ror:%d row_mask:0xf bank_mask:0xf" % sh)
    a("v_cvt_pk_bf16_f32 v60, v60, v60")
    a("v_lshlrev_b32 v60, 16, v60")
    a("v_mul_f32 v60, s31, v60")
    a("v_exp_f32 v60, -v60")
    a("v_add_f32 v60, 1.0, v60")
    a("v_rcp_f32 v60, v60")
    a("v_cvt_pk_bf16_f32 v60, v60, v60")
    a("v_lshlrev_b32 v60, 16, v60")
    a("v_lshlrev_b32 v14, 2, v14")
    a("v_cmp_eq_u32 vcc, 0, v3")
    a("s_and_saveexec_b64 s[28:29], vcc")
    a("buffer_store_dword v60, v14, s[12:15], 0 offen offset:0" .replace("offset:0", "") .replace("s[12:15], 0", "s[12:15], s36") if False else
      "s_mov_b32 s36, 0x%x" % WS_G)
    a("buffer_store_dword v60, v14, s[12:15], s36 offen", tag="gst")
    a("s_mov_b64 exec, s[28:29]")
    a("v_lshlrev_b32 v14, 2, v2")
    a("v_sub_u32 v14, v3, v14")
    for r in range(4):
        a("v_subrev_u32 v15, %d, v14" % r)
        a("v_and_b32 v16, 1, v15")
        a("v_cmp_eq_u32 vcc, 0, v16")
        a("v_cmp_le_i32 s[28:29], 0, v15")
        a("s_and_b64 s[%d:%d], vcc, s[28:29]" % (32 + 2 * r, 33 + 2 * r))
        a("v_cmp_ge_i32 s[28:29], -2, v15")
        a("s_and_b64 s[%d:%d], vcc, s[28:29]" % (40 + 2 * r, 41 + 2 * r))
    a("s_or_b32 s28, s20, s27")
    a("s_cmp_eq_u32 s28, 0")
    for r in range(4):
        a("s_cselect_b64 s[%d:%d], 0, s[%d:%d]" % (48 + 2 * r, 49 + 2 * r, 40 + 2 * r, 41 + 2 * r))
    a("s_mov_b32 s56, 0xffff0000"); a("s_mov_b32 s57, -1")
    a("s_mov_b32 s58, 0"); a("s_mov_b32 s59, -1")
    a("s_mov_b32 s60, 0"); a("s_mov_b32 s61, 0xffff0000")
    a.wait_vm(("dma", 0), "lgkmcnt(0)")
    a("s_barrier")
    for r in k1_reads(0, 1, 1):
        a(r)
    k1_pass(a, 1, 1)
    KP = 176
    VP = 56
    for P in range(2):
        for t in range(5):
            b = KA + (P * 5 + t) * 4
            a("v_cvt_pk_bf16_f32 v%d, v%d, v%d" % (KP + (P + 1) * 10 + 2 * t, b, b + 1))
            a("v_cvt_pk_bf16_f32 v%d, v%d, v%d" % (KP + (P + 1) * 10 + 2 * t + 1, b + 2, b + 3))
            b = VA + (P * 5 + t) * 4
            a("v_cvt_pk_bf16_f32 v%d, v%d, v%d" % (VP + t * 6 + 2 + 2 * P, b, b + 1))
            a("v_cvt_pk_bf16_f32 v%d, v%d, v%d" % (VP + t * 6 + 3 + 2 * P, b + 2, b + 3))
    a("v_lshlrev_b32 v15, 3, v1")
    a("s_mul_i32 s28, s27, 5120")
    a("s_add_u32 s28, s28, %d" % EXC)
    a("v_add_u32 v15, s28, v15")
    for t in range(5):
        a("ds_write_b64 v15, %s offset:%d" % (vr(KP + 20 + 2 * t, 2), t * 512))
        a("ds_write_b64 v15, %s offset:%d" % (vr(VP + t * 6 + 4, 2), 2560 + t * 512))
    a("v_lshlrev_b32 v14, 4, v1")
    a("s_cmp_eq_u32 s27, 0")
    a("s_cbranch_scc1 L_b_w0")
    a("s_mul_i32 s28, s27, 10240")
    a("s_add_u32 s28, s28, %d" % (HALO - 10240))
    a("v_add_u32 v16, s28, v14")
    for j in range(10):
        a("ds_write_b128 v16, %s offset:%d" % (vr(HA + 4 * j), j * 1024))
    a.label("L_b_w0")
    a("s_waitcnt lgkmcnt(0)")
    a("s_barrier")
    a("s_cmp_eq_u32 s27, 0")
    a("s_cbranch_scc0 L_b_nw0")
    a("v_add_u32 v16, %d, v14" % HALO)
    for ww in range(3):
        for j in range(10):
            a("ds_read_b128 %s, v16 offset:%d" % (vr(96 + 4 * j), ww * 10240 + j * 1024))
        a("s_waitcnt lgkmcnt(0)")
        for q in range(40):
            a("v_add_f32 v%d, v%d, v%d" % (HA + q, HA + q, 96 + q))
    for t in range(5):
        b = HA + t * 4
        a("v_cvt_pk_bf16_f32 v%d, v%d, v%d" % (KP + 2 * t, b, b + 1))
        a("v_cvt_pk_bf16_f32 v%d, v%d, v%d" % (KP + 2 * t + 1, b + 2, b + 3))
        b = HA + 20 + t * 4
        a("v_cvt_pk_bf16_f32 v%d, v%d, v%d" % (VP + t * 6, b, b + 1))
        a("v_cvt_pk_bf16_f32 v%d, v%d, v%d" % (VP + t * 6 + 1, b + 2, b + 3))
    a("s_branch L_b_j")
    a.label("L_b_nw0")
    a("v_subrev_u32 v15, 5120, v15")
    for t in range(5):
        a("ds_read_b64 %s, v15 offset:%d" % (vr(KP + 2 * t, 2), t * 512))
        a("ds_read_b64 %s, v15 offset:%d" % (vr(VP + t * 6, 2), 2560 + t * 512))
    a("s_waitcnt lgkmcnt(0)")
    a.label("L_b_j")
    enter_pass2(a, 1)
    k1_pass(a, 2, 1)
    QP = 136
    for P in range(2):
        for t in range(5):
            b = QA + (P * 5 + t) * 4
            a("v_cvt_pk_bf16_f32 v%d, v%d, v%d" % (QP + P * 10 + 2 * t, b, b + 1))
            a("v_cvt_pk_bf16_f32 v%d, v%d, v%d" % (QP + P * 10 + 2 * t + 1, b + 2, b + 3))
    a("v_mov_b32 v14, 0xf149f2ca")
    a("s_mov_b32 s30, 0x%x" % SCALE)
    frag_store_setup(a, WS_OB)
    for P in range(2):
        OACC = 96
        for h in range(4):
            QM = 16 + h * 4
            for q in range(2):
                src = QP + P * 10 + 2 * h + q
                if h == 0:
                    a("v_mov_b32 v%d, v%d" % (QM + q, src))
                else:
                    a("v_cndmask_b32 v%d, 0, v%d, s[%d:%d]" % (QM + q, src, 54 + 2 * h, 55 + 2 * h))
                src = QP + P * 10 + 2 * h + 2 + q
                if h == 3:
                    a("v_mov_b32 v%d, v%d" % (QM + 2 + q, src))
                else:
                    a("v_cndmask_b32 v%d, v%d, 0, s[%d:%d]" % (QM + 2 + q, src, 56 + 2 * h, 57 + 2 * h))
        for h in range(4):
            QM = 16 + h * 4
            SB = 206 + h * 8
            a("%s %s, %s, %s, 0" % (MF, vr(SB), vr(KP + P * 10 + 2 * h), vr(QM)))
            a("%s %s, %s, %s, 0" % (MF, vr(SB + 4), vr(KP + (P + 1) * 10 + 2 * h), vr(QM)))
        H = range(4)
        def SBr(h): return 206 + h * 8
        def TM(h): return 32 + h * 6
        for rnd in range(2):
            for h in H:
                for m in range(4):
                    a("v_cvt_pk_bf16_f32 v%d, v%d, v%d" % (TM(h) + m, SBr(h) + 2 * m, SBr(h) + 2 * m + 1))
            for h in H:
                for m in range(4):
                    a("v_lshlrev_b32 v%d, 16, v%d" % (SBr(h) + 2 * m, TM(h) + m))
                    a("v_and_b32 v%d, 0xffff0000, v%d" % (SBr(h) + 2 * m + 1, TM(h) + m))
            if rnd == 0:
                for h in H:
                    for m in range(8):
                        a("v_mul_f32 v%d, s30, v%d" % (SBr(h) + m, SBr(h) + m))
        for h in H:
            for r in range(4):
                mp = (48 if P == 0 else 40) + 2 * r
                a("v_cndmask_b32 v%d, v14, v%d, s[%d:%d]" % (SBr(h) + r, SBr(h) + r, mp, mp + 1))
                a("v_cndmask_b32 v%d, v14, v%d, s[%d:%d]" % (SBr(h) + 4 + r, SBr(h) + 4 + r, 32 + 2 * r, 33 + 2 * r))
        for h in H:
            s = SBr(h); mx = TM(h) + 4
            a("v_max3_f32 v%d, v%d, v%d, v%d" % (mx, s, s + 1, s + 2))
            a("v_max3_f32 v%d, v%d, v%d, v%d" % (mx, mx, s + 3, s + 4))
            a("v_max3_f32 v%d, v%d, v%d, v%d" % (mx, mx, s + 5, s + 6))
            a("v_max_f32 v%d, v%d, v%d" % (mx, mx, s + 7))
        def xred(op):
            for sw in ("v_permlane16_swap_b32", "v_permlane32_swap_b32"):
                for h in H:
                    a("v_mov_b32 v%d, v%d" % (TM(h) + 5, TM(h) + 4))
                for h in H:
                    a("%s v%d, v%d" % (sw, TM(h) + 4, TM(h) + 5))
                for h in H:
                    a("%s v%d, v%d, v%d" % (op, TM(h) + 4, TM(h) + 4, TM(h) + 5))
        xred("v_max_f32")
        for h in H:
            a("v_mul_f32 v%d, s31, v%d" % (TM(h) + 4, TM(h) + 4))
        for h in H:
            for m in range(8):
                a("v_fma_f32 v%d, v%d, s31, -v%d" % (SBr(h) + m, SBr(h) + m, TM(h) + 4))
        for h in H:
            for m in range(8):
                a("v_exp_f32 v%d, v%d" % (SBr(h) + m, SBr(h) + m))
        for h in H:
            s = SBr(h); sm = TM(h) + 4
            a("v_add_f32 v%d, v%d, v%d" % (sm, s, s + 1))
            for m in range(2, 8):
                a("v_add_f32 v%d, v%d, v%d" % (sm, sm, s + m))
        xred("v_add_f32")
        for h in H:
            a("v_rcp_f32 v%d, v%d" % (TM(h) + 4, TM(h) + 4))
        for h in H:
            for m in range(8):
                a("v_mul_f32 v%d, v%d, v%d" % (SBr(h) + m, SBr(h) + m, TM(h) + 4))
        for h in H:
            for m in range(4):
                a("v_cvt_pk_bf16_f32 v%d, v%d, v%d" % (TM(h) + m, SBr(h) + 2 * m, SBr(h) + 2 * m + 1))
        for h in H:
            for tt in range(2):
                t = h + tt
                a("%s %s, %s, %s, 0" % (MF, vr(OACC + (h * 2 + tt) * 4), vr(VP + t * 6 + 2 * P), vr(TM(h))))
        OP = 160 + P * 10
        for t in range(5):
            if t == 0:
                src = OACC + 0
            elif t == 4:
                src = OACC + (3 * 2 + 1) * 4
            else:
                src = OACC + (t * 2) * 4
                oth = OACC + ((t - 1) * 2 + 1) * 4
                for r in range(4):
                    a("v_cndmask_b32 v%d, v%d, v%d, s[%d:%d]" % (src + r, oth + r, src + r, 54 + 2 * t, 55 + 2 * t))
            a("v_cvt_pk_bf16_f32 v%d, v%d, v%d" % (OP + 2 * t, src, src + 1))
            a("v_cvt_pk_bf16_f32 v%d, v%d, v%d" % (OP + 2 * t + 1, src + 2, src + 3))
        store_frag(a, OP, P)
    a.label("L_k1_end")
    a("s_endpgm")

K2_NBUF = 7
K2_SCR = K2_NBUF * 20480

def k2_dma_unit(a, u):
    buf = u % K2_NBUF
    def kk(ks):
        q5, m = divmod(ks, 5)
        if m == 2:
            return 160 * q5, 2
        hgp = 2 * q5 + (1 if m >= 3 else 0)
        c = m if m < 2 else m - 3
        return 80 * hgp, c
    k00, k10 = kk(2 * u); k01, k11 = kk(2 * u + 1)
    a("s_cmp_eq_u32 s24, 0")
    a("s_cselect_b32 s28, %d, %d" % (k00 // 16, k01 // 16))
    a("s_cselect_b32 s29, %d, %d" % (k10, k11))
    a("s_lshl_b32 s28, s28, 4")
    a("s_mul_i32 s29, s29, s25")
    a("s_add_u32 s28, s28, s29")
    a("s_mul_i32 s28, s28, 1280")
    a("s_add_u32 s28, s28, s23")
    pat = 5
    if u in (1, 6): pat = 10
    if u in (3, 8): pat = 15
    for i5 in range(5):
        a("s_add_u32 m0, s26, %d" % (buf * 20480 + i5 * 1024))
        a("buffer_load_dwordx4 v%d, s[8:11], s28 offen lds" % (pat + i5), tag=("dma", u))

def k2_reads(ks):
    u = ks >> 1; par = ks & 1; buf = u % K2_NBUF
    st = ks & 1
    out = []
    img = buf * 20480 + par * 5120
    base = 20 + img // 61440
    img -= (img // 61440) * 61440
    for t in range(5):
        f = 24 + st * 20 + t * 4
        for h in range(2):
            out.append("ds_read_b64_tr_b16 %s, v%d offset:%d" % (vr(f + 2 * h, 2), base, img + h * 2560 + 32 * t))
    return out

def gen_k2(a):
    a.raw(".globl k2_kernel\n.p2align 8\n.type k2_kernel,@function\nk2_kernel:")
    a.hist = []; a.vm = []
    a("s_cmp_ge_u32 s2, 256")
    a("s_cbranch_scc1 L_k2_end")
    load_kernargs(a)
    a("s_and_b32 s28, s2, 7")
    a("s_lshr_b32 s29, s2, 3")
    a("s_lshr_b32 s20, s28, 1")
    a("s_lshl_b32 s20, s20, 3")
    a("s_lshr_b32 s30, s29, 2")
    a("s_add_u32 s20, s20, s30")
    a("s_and_b32 s21, s28, 1")
    a("s_lshl_b32 s21, s21, 2")
    a("s_and_b32 s30, s29, 3")
    a("s_add_u32 s21, s21, s30")
    a("v_and_b32 v1, 63, v0")
    a("v_lshrrev_b32 v2, 6, v0")
    a("v_readfirstlane_b32 s27, v2")
    a("v_lshrrev_b32 v2, 4, v1")
    a("v_and_b32 v3, 15, v1")
    a("s_lshr_b32 s3, s27, 1")
    a("s_and_b32 s24, s27, 1")
    a("s_waitcnt lgkmcnt(0)")
    a("s_cmp_eq_u32 s3, 0")
    a("s_cselect_b32 s8, s70, s76")
    a("s_cselect_b32 s9, s71, s77")
    a("s_mov_b32 s10, 819200")
    a("s_mov_b32 s11, 0x00020000")
    a("s_cselect_b32 s25, 8, 32")
    a("s_mov_b32 s28, 0x%x" % WS_OA)
    a("s_mov_b32 s29, 0x%x" % WS_OB)
    a("s_cselect_b32 s22, s28, s29")
    srd(a, 12, 84, 85, 0x10000000)
    srd(a, 16, 80, 81, 2621440)
    a("s_mul_i32 s23, s21, 160")
    a("s_mul_i32 s26, s27, 5120")
    a("s_lshl_b32 s28, s20, 2")
    a("s_lshl_b32 s29, s24, 1")
    a("s_add_u32 s28, s28, s29")
    a("s_mul_i32 s28, s28, 20480")
    a("s_add_u32 s22, s22, s28")
    a("s_add_u32 s30, s22, 20480")
    a("v_lshlrev_b32 v4, 4, v1")
    for i5 in range(5):
        dma_row_decode(a, 24, 25, i5, 26)
        a("v_lshrrev_b32 v26, 4, v24")
        a("v_bfe_u32 v27, v24, 2, 2")
        a("v_and_b32 v28, 3, v24")
        a("v_mul_u32_u24 v29, 20, v27")
        a("v_lshlrev_b32 v30, 2, v27")
        a("s_cmp_eq_u32 s3, 0")
        a("s_cselect_b64 vcc, -1, 0")
        a("v_cndmask_b32 v29, v30, v29, vcc")
        a("v_add_u32 v29, v29, v28")
        a("v_lshlrev_b32 v30, 2, v26")
        a("v_lshlrev_b32 v31, 4, v26")
        a("v_cndmask_b32 v30, v31, v30, vcc")
        a("v_add_u32 v30, v30, v29")
        a("v_mul_u32_u24 v31, 80, v26")
        a("v_add_u32 v31, v31, v29")
        a("v_mul_u32_u24 v30, 1280, v30")
        a("v_mul_u32_u24 v31, 1280, v31")
        a("v_lshl_add_u32 v%d, v25, 4, v30" % (5 + i5))
        a("v_lshl_add_u32 v31, v25, 4, v31")
        a("s_cmp_eq_u32 s24, 0")
        a("s_cselect_b64 vcc, -1, 0")
        a("v_cndmask_b32 v%d, v%d, v31, vcc" % (10 + i5, 5 + i5))
        a("v_cndmask_b32 v%d, v31, v%d, vcc" % (15 + i5, 5 + i5))
    def oloads(lo, hi):
        for ks in range(lo, hi):
            off = ks * 1024
            so = "s22"
            a("s_add_u32 s28, s22, %d" % off)
            a("s_add_u32 s29, s30, %d" % off)
            a("buffer_load_dwordx4 %s, v4, s[12:15], s28 offen" % ar((ks * 2) * 4), tag=("x", ks))
            a("buffer_load_dwordx4 %s, v4, s[12:15], s29 offen" % ar((ks * 2 + 1) * 4), tag=("x", ks))
    k2_dma_unit(a, 0)
    oloads(0, 2)
    k2_dma_unit(a, 1)
    oloads(2, 4)
    k2_dma_unit(a, 2)
    oloads(4, 6)
    k2_dma_unit(a, 3)
    oloads(6, 12)
    k2_dma_unit(a, 4)
    oloads(12, 16)
    k2_dma_unit(a, 5)
    oloads(16, 20)
    k2_dma_unit(a, 6)
    a("s_lshl_b32 s28, s20, 6")
    a("s_lshl_b32 s29, s24, 5")
    a("s_add_u32 s28, s28, s29")
    a("v_add_u32 v64, s28, v3")
    a("v_lshlrev_b32 v65, 2, v64")
    a("s_mov_b32 s29, 0x%x" % WS_G)
    a("buffer_load_dword v66, v65, s[12:15], s29 offen", tag="g")
    a("buffer_load_dword v67, v65, s[12:15], s29 offen offset:64", tag="g")
    a("v_lshrrev_b32 v24, 2, v3")
    a("v_and_b32 v25, 3, v3")
    a("v_lshl_add_u32 v24, v2, 2, v24")
    a("v_mul_u32_u24 v24, 160, v24")
    a("v_lshl_add_u32 v24, v25, 3, v24")
    a("s_mul_i32 s28, s3, 10240")
    a("v_add_u32 v20, s28, v24")
    a("v_add_u32 v21, 61440, v20")
    a("v_add_u32 v22, 61440, v21")
    ACC = 72
    a.wait_vm(("dma", 0))
    a("s_barrier")
    for r in k2_reads(0):
        a(r)
    for ks in range(20):
        a("s_waitcnt lgkmcnt(0)")
        a.wait_vm(("x", ks))
        nxt = ks + 1
        rd = []
        if nxt < 20:
            if nxt % 2 == 0:
                un = nxt // 2
                a.wait_vm(("dma", un))
                a("s_barrier")
                if un - 1 + K2_NBUF < 10:
                    k2_dma_unit(a, un - 1 + K2_NBUF)
            rd = k2_reads(nxt)
        mf = []
        st = ks & 1
        for t in range(5):
            for P in range(2):
                acc = vr(ACC + (P * 5 + t) * 4)
                mf.append("%s %s, %s, %s, %s" % (MF, acc, vr(24 + st * 20 + t * 4), ar((ks * 2 + P) * 4), "0" if ks == 0 else acc))
        interleave(a, mf, rd)
    a("v_lshlrev_b32 v24, 4, v1")
    a("s_mul_i32 s28, s24, 10240")
    a("s_add_u32 s28, s28, %d" % K2_SCR)
    a("v_add_u32 v24, s28, v24")
    a("s_cmp_eq_u32 s3, 0")
    a("s_cbranch_scc1 L_k2_a")
    for j in range(10):
        a("ds_write_b128 v24, %s offset:%d" % (vr(ACC + 4 * j), j * 1024))
    a("s_waitcnt lgkmcnt(0)")
    a("s_barrier")
    a("s_endpgm")
    a.label("L_k2_a")
    a("s_barrier")
    BB = 112
    for j in range(10):
        a("ds_read_b128 %s, v24 offset:%d" % (vr(BB + 4 * j), j * 1024))
    a.wait_vm("g", "lgkmcnt(0)")
    a("v_mul_u32_u24 v64, 1280, v64")
    a("v_lshl_add_u32 v64, v2, 3, v64")
    a("s_add_u32 s29, s23, 20480")
    for P in range(2):
        gq = 66 + P
        a("v_sub_f32 v68, 1.0, v%d" % gq)
        a("v_cvt_pk_bf16_f32 v68, v68, v68")
        a("v_lshlrev_b32 v68, 16, v68")
        for t in range(5):
            A0 = ACC + (P * 5 + t) * 4
            B0 = BB + (P * 5 + t) * 4
            for X in (A0, B0):
                a("v_cvt_pk_bf16_f32 v28, v%d, v%d" % (X, X + 1))
                a("v_cvt_pk_bf16_f32 v29, v%d, v%d" % (X + 2, X + 3))
                a("v_lshlrev_b32 v%d, 16, v28" % X)
                a("v_and_b32 v%d, 0xffff0000, v28" % (X + 1))
                a("v_lshlrev_b32 v%d, 16, v29" % (X + 2))
                a("v_and_b32 v%d, 0xffff0000, v29" % (X + 3))
                mul = gq if X == A0 else 68
                for r in range(4):
                    a("v_mul_f32 v%d, v%d, v%d" % (X + r, X + r, mul))
                a("v_cvt_pk_bf16_f32 v28, v%d, v%d" % (X, X + 1))
                a("v_cvt_pk_bf16_f32 v29, v%d, v%d" % (X + 2, X + 3))
                a("v_lshlrev_b32 v%d, 16, v28" % X)
                a("v_and_b32 v%d, 0xffff0000, v28" % (X + 1))
                a("v_lshlrev_b32 v%d, 16, v29" % (X + 2))
                a("v_and_b32 v%d, 0xffff0000, v29" % (X + 3))
            for r in range(4):
                a("v_add_f32 v%d, v%d, v%d" % (A0 + r, A0 + r, B0 + r))
            a("v_cvt_pk_bf16_f32 v%d, v%d, v%d" % (B0, A0, A0 + 1))
            a("v_cvt_pk_bf16_f32 v%d, v%d, v%d" % (B0 + 1, A0 + 2, A0 + 3))
            a("buffer_store_dwordx2 %s, v64, s[16:19], %s offen offset:%d" % (vr(B0, 2), "s23" if P == 0 else "s29", t * 32))
    a.label("L_k2_end")
    a("s_endpgm")

HEADER = open("cdna_kernels/%s.s.ref" % NAME).read().split("; Override launch")[0]

def main(path):
    a = Asm()
    a.raw(HEADER.rstrip())
    a.raw("; @launch kernel=k1_kernel grid=(256,1,1) block=(256,1,1) lds=163840")
    a.raw("; @launch kernel=k2_kernel grid=(256,1,1) block=(256,1,1) lds=163840")
    a.raw('.amdgcn_target "amdgcn-amd-amdhsa--gfx950"\n.text')
    gen_k1(a)
    gen_k2(a)
    a.raw('.section .rodata,"a"')
    for k in ("k1_kernel", "k2_kernel"):
        a.raw(""".p2align 6
.amdhsa_kernel %s
  .amdhsa_next_free_vgpr 512
  .amdhsa_next_free_sgpr 102
  .amdhsa_accum_offset 256
  .amdhsa_group_segment_fixed_size 0
  .amdhsa_kernarg_size 88
  .amdhsa_user_sgpr_count 2
  .amdhsa_user_sgpr_kernarg_segment_ptr 1
  .amdhsa_system_sgpr_workgroup_id_x 1
.end_amdhsa_kernel""" % k)
    open(path, "w").write(a.text())
    print("instructions:", a.n_ins)

if __name__ == "__main__":
    main(sys.argv[1] if len(sys.argv) > 1 else "cdna_kernels/%s.s" % NAME)
```

```python
import sys
sys.path.insert(0, "tools")
from emit import Asm

NAME = "gated_mix__linear_kernel_hedgehog__sliding_local_dilated__prompt"
WS_KVT = 0
WS_G = 0x20000
WS_OA = 0x40000
WS_OB = 0x40000 + 0x280000
L2E = 0x3fb8aa3b
SCALE = 0x3e64f92e
MF = "v_mfma_f32_16x16x32_bf16"

RING = 0
SCR = 81920
WPHI = SCR
ZR = SCR + 3328
KVB = SCR + 5376
VFR = SCR + 13824
PHI = SCR + 34304
PHI_STRIDE = 352
HALO = SCR
EXC = SCR + 30720

STAMPS = False
WS_ST = 0x800000
def stamp(a, n, kern=0):
    if not STAMPS: return
    a("s_memtime s[90:91]")
    a("s_waitcnt lgkmcnt(0)")
    a("v_accvgpr_write_b32 a200, s90")
    a("s_lshl_b32 s92, s2, 2")
    a("s_add_u32 s92, s92, s27")
    a("s_lshl_b32 s92, s92, 7")
    a("s_add_u32 s92, s92, 0x%x" % (WS_ST + kern * 0x20000 + n * 4))
    a("buffer_store_dword a200, off, s[12:15], s92")

def vr(b, n=4):
    return "v[%d:%d]" % (b, b + n - 1)
def ar(b, n=4):
    return "a[%d:%d]" % (b, b + n - 1)

def srd(a, d, lo, hi, size):
    a("s_mov_b32 s%d, s%d" % (d, lo))
    a("s_mov_b32 s%d, s%d" % (d + 1, hi))
    a("s_mov_b32 s%d, 0x%x" % (d + 2, size))
    a("s_mov_b32 s%d, 0x00020000" % (d + 3))

def load_kernargs(a):
    a("s_load_dwordx16 s[64:79], s[0:1], 0")
    a("s_load_dwordx4 s[80:83], s[0:1], 64")
    a("s_load_dwordx2 s[84:85], s[0:1], 80")

def dma_row_decode(a, vdst_p, vdst_cc, i5, vt):
    a("v_add_u32 v%d, %d, v1" % (vt, i5 * 64))
    a("v_mul_u32_u24 v%d, 0x199a, v%d" % (vdst_p, vt))
    a("v_lshrrev_b32 v%d, 16, v%d" % (vdst_p, vdst_p))
    a("v_mul_u32_u24 v%d, 10, v%d" % (vdst_cc, vdst_p))
    a("v_sub_u32 v%d, v%d, v%d" % (vdst_cc, vt, vdst_cc))

def xlane_reduce(a, op, v, t):
    a("v_mov_b32 v%d, v%d" % (t, v))
    a("v_permlane16_swap_b32 v%d, v%d" % (v, t))
    a("%s v%d, v%d, v%d" % (op, v, v, t))
    a("v_mov_b32 v%d, v%d" % (t, v))
    a("v_permlane32_swap_b32 v%d, v%d" % (v, t))
    a("%s v%d, v%d, v%d" % (op, v, v, t))

def poll(a, name, off, target):
    a("s_mov_b32 s29, 0x20000")
    a.label(name)
    a("buffer_load_dword v15, off, s[16:19], s30 offset:%d sc1" % off)
    a.wait_vm_all()
    a("v_readfirstlane_b32 s28, v15")
    a("s_cmp_ge_u32 s28, %d" % target)
    a("s_cbranch_scc1 %s_done" % name)
    a("s_sleep 2")
    a("s_sub_u32 s29, s29, 1")
    a("s_cmp_lg_u32 s29, 0")
    a("s_cbranch_scc1 %s" % name)
    a.label(name + "_done")

def k1_dma_unit(a, n):
    buf = n % 4
    if n < 10:
        a("s_add_u32 s28, s24, 0x%x" % (n * 245760))
    else:
        a("s_add_u32 s28, s25, 0x%x" % ((n - 10) * 491520))
    for i5 in range(5):
        a("s_add_u32 m0, s26, %d" % (buf * 20480 + i5 * 1024))
        a("buffer_load_dwordx4 v%d, s[8:11], s28 offen lds" % (5 + i5), tag=("dma", n))

def k1_reads(ks, pas, br):
    out = []
    if pas == 1:
        u = ks >> 1; aa = ks & 1; buf = u % 4
        st = ks & 1
        for j in range(10):
            seg = 0 if j < 5 else 1
            t = j % 5
            img = buf * 20480 + (aa * 2 + seg) * 5120
            blk = (seg == 0 and br == 0)
            base = (12 if blk else 10) + (1 if buf >= 2 else 0)
            if buf >= 2: img -= 40960
            co = 8 * t if blk else 32 * t
            f = 16 + st * 40 + j * 4
            for h in range(2):
                out.append("ds_read_b64_tr_b16 %s, v%d offset:%d" % (vr(f + 2 * h, 2), base, img + h * 2560 + co))
    else:
        u = 10 + (ks >> 2); aa = ks & 3; buf = u % 4
        st = ks & 1
        for t in range(5):
            img = buf * 20480 + aa * 5120
            blk = (br == 0)
            base = (12 if blk else 10) + (1 if buf >= 2 else 0)
            if buf >= 2: img -= 40960
            co = 8 * t if blk else 32 * t
            f = 16 + st * 20 + t * 4
            for h in range(2):
                out.append("ds_read_b64_tr_b16 %s, v%d offset:%d" % (vr(f + 2 * h, 2), base, img + h * 2560 + co))
    return out

KA = 96; VA = 136; QA = 96; HA = 216

def k1_mfmas(ks, pas):
    out = []
    st = ks & 1
    if pas == 1:
        for j in range(10):
            t = j % 5
            f = vr(16 + st * 40 + j * 4)
            for P in range(2):
                x = ar((ks * 2 + P) * 4)
                if j < 5:
                    acc = vr(KA + (P * 5 + t) * 4)
                    out.append("%s %s, %s, %s, %s" % (MF, acc, f, x, "0" if ks == 0 else acc))
                else:
                    acc = vr(VA + (P * 5 + t) * 4)
                    out.append("%s %s, %s, %s, %s" % (MF, acc, x, f, "0" if ks == 0 else acc))
    else:
        for t in range(5):
            f = vr(16 + st * 20 + t * 4)
            for P in range(2):
                x = ar((ks * 2 + P) * 4)
                acc = vr(QA + (P * 5 + t) * 4)
                out.append("%s %s, %s, %s, %s" % (MF, acc, f, x, "0" if ks == 0 else acc))
    return out

def interleave(a, mf, rd):
    n = len(mf); m = len(rd); k = 0
    for i, x in enumerate(mf):
        a(x)
        want = (i + 1) * m // n
        while k < want:
            a(rd[k]); k += 1
    while k < m:
        a(rd[k]); k += 1

def k1_pass(a, pas, br, hook=None):
    per = 2 if pas == 1 else 4
    ubase = 0 if pas == 1 else 10
    for ks in range(20):
        a("s_waitcnt lgkmcnt(0)")
        a.wait_vm(("x", ks))
        nxt = ks + 1
        rd = []
        if nxt < 20:
            if nxt % per == 0:
                un = ubase + nxt // per
                a.wait_vm(("dma", un))
                a("s_barrier")
                if un + 3 < 15:
                    k1_dma_unit(a, un + 3)
                if hook: hook(un)
            rd = k1_reads(nxt, pas, br)
        interleave(a, k1_mfmas(ks, pas), rd)
        if pas == 1 and br == 1:
            a("s_cmp_eq_u32 s27, %d" % (ks & 3))
            a("s_cbranch_scc0 L_h%d" % ks)
            a.wait_vm(("xh", ks >> 2))
            st = ks & 1
            for j in range(10):
                f = vr(16 + st * 40 + j * 4)
                x = ar(160 + (ks >> 2) * 4)
                acc = vr(HA + j * 4)
                if j < 5:
                    a("%s %s, %s, %s, %s" % (MF, acc, f, x, acc))
                else:
                    a("%s %s, %s, %s, %s" % (MF, acc, x, f, acc))
            a.label("L_h%d" % ks)

def enter_pass2(a, br):
    a.wait_vm(("dma", 10))
    a("s_barrier")
    k1_dma_unit(a, 13)
    for r in k1_reads(0, 2, br):
        a(r)

WF = 176

def load_wphi_frags(a):
    for tp in range(5):
        for c in range(3):
            f = WF + (tp * 3 + c) * 4
            a("ds_read_b64_tr_b16 %s, v14 offset:%d" % (vr(f, 2), (8 * c) * 40 + 8 * tp))
            if c < 2:
                a("ds_read_b64_tr_b16 %s, v14 offset:%d" % (vr(f + 2, 2), (8 * c + 4) * 40 + 8 * tp))
            else:
                a("v_mov_b32 v%d, 0" % (f + 2))
                a("v_mov_b32 v%d, 0" % (f + 3))

def phi_stage(a, acc, out, T):
    kp = T; pk = T + 12; em = T + 32; tmp = T + 52
    for t in range(5):
        a("v_cvt_pk_bf16_f32 v%d, v%d, v%d" % (kp + 2 * t, acc + 4 * t, acc + 4 * t + 1))
        a("v_cvt_pk_bf16_f32 v%d, v%d, v%d" % (kp + 2 * t + 1, acc + 4 * t + 2, acc + 4 * t + 3))
    a("v_mov_b32 v%d, 0" % (kp + 10))
    a("v_mov_b32 v%d, 0" % (kp + 11))
    for c in range(3):
        for tp in range(5):
            d = vr(pk + 4 * tp)
            a("%s %s, %s, %s, %s" % (MF, d, vr(WF + (tp * 3 + c) * 4), vr(kp + 4 * c), "0" if c == 0 else d))
    for m in range(10):
        a("v_cvt_pk_bf16_f32 v%d, v%d, v%d" % (kp + m, pk + 2 * m, pk + 2 * m + 1))
    for m in range(10):
        a("v_lshlrev_b32 v%d, 16, v%d" % (pk + 2 * m, kp + m))
        a("v_and_b32 v%d, 0xffff0000, v%d" % (pk + 2 * m + 1, kp + m))
    mx = tmp; mn = tmp + 1; s1 = tmp + 2; s2 = tmp + 3
    a("v_max3_f32 v%d, v%d, v%d, v%d" % (mx, pk, pk + 1, pk + 2))
    a("v_min3_f32 v%d, v%d, v%d, v%d" % (mn, pk, pk + 1, pk + 2))
    for m in range(3, 19, 2):
        a("v_max3_f32 v%d, v%d, v%d, v%d" % (mx, mx, pk + m, pk + m + 1))
        a("v_min3_f32 v%d, v%d, v%d, v%d" % (mn, mn, pk + m, pk + m + 1))
    a("v_max_f32 v%d, v%d, v%d" % (mx, mx, pk + 19))
    a("v_min_f32 v%d, v%d, v%d" % (mn, mn, pk + 19))
    a("v_mul_f32 v%d, s31, v%d" % (mx, mx))
    a("v_mul_f32 v%d, s31, v%d" % (mn, mn))
    for m in range(20):
        a("v_fma_f32 v%d, -v%d, s31, v%d" % (em + m, pk + m, mn))
        a("v_fma_f32 v%d, v%d, s31, -v%d" % (pk + m, pk + m, mx))
    for m in range(20):
        a("v_exp_f32 v%d, v%d" % (pk + m, pk + m))
        a("v_exp_f32 v%d, v%d" % (em + m, em + m))
    a("v_add_f32 v%d, v%d, v%d" % (s1, pk, pk + 1))
    a("v_add_f32 v%d, v%d, v%d" % (s2, em, em + 1))
    for m in range(2, 20):
        a("v_add_f32 v%d, v%d, v%d" % (s1, s1, pk + m))
        a("v_add_f32 v%d, v%d, v%d" % (s2, s2, em + m))
    a("v_rcp_f32 v%d, v%d" % (s1, s1))
    a("v_rcp_f32 v%d, v%d" % (s2, s2))
    for m in range(20):
        a("v_mul_f32 v%d, v%d, v%d" % (pk + m, pk + m, s1))
        a("v_mul_f32 v%d, v%d, v%d" % (em + m, em + m, s2))
    for m in range(10):
        a("v_cvt_pk_bf16_f32 v%d, v%d, v%d" % (out + m, pk + 2 * m, pk + 2 * m + 1))
        a("v_cvt_pk_bf16_f32 v%d, v%d, v%d" % (out + 10 + m, em + 2 * m, em + 2 * m + 1))

def store_frag(a, op, P):
    a("buffer_store_dwordx4 %s, v15, s[12:15], s22 offen offset:%d" % (vr(op), 0), tag="st")
    a("buffer_store_dwordx4 %s, v15, s[12:15], s22 offen offset:%d" % (vr(op + 4), 1024), tag="st")
    a("buffer_store_dwordx2 %s, v15, s[12:15], s23 offen" % (vr(op + 8, 2)), tag="st")
    if P == 0:
        a("s_add_u32 s22, s22, 20480")
        a("s_add_u32 s23, s23, 20480")

def frag_store_setup(a, wsoff):
    a("s_lshl_b32 s22, s20, 3")
    a("s_lshl_b32 s28, s27, 1")
    a("s_add_u32 s22, s22, s28")
    a("s_mul_i32 s22, s22, 20480")
    a("s_add_u32 s22, s22, 0x%x" % wsoff)
    a("s_lshr_b32 s28, s21, 1")
    a("s_mul_i32 s28, s28, 5120")
    a("s_add_u32 s22, s22, s28")
    a("s_add_u32 s23, s22, 2048")
    a("s_and_b32 s28, s21, 1")
    a("s_mul_i32 s29, s28, 3072")
    a("s_add_u32 s22, s22, s29")
    a("s_lshl_b32 s28, s28, 3")
    a("s_add_u32 s23, s23, s28")
    a("v_lshlrev_b32 v15, 4, v1")

def gen_k1(a):
    a.raw(".globl k1_kernel\n.p2align 8\n.type k1_kernel,@function\nk1_kernel:")
    a("s_cmp_ge_u32 s2, 256")
    a("s_cbranch_scc1 L_k1_end")
    load_kernargs(a)
    a("s_and_b32 s28, s2, 7")
    a("s_lshr_b32 s29, s2, 3")
    a("s_lshr_b32 s20, s28, 2")
    a("s_lshl_b32 s20, s20, 3")
    a("s_lshr_b32 s30, s29, 2")
    a("s_add_u32 s20, s20, s30")
    a("s_and_b32 s21, s28, 3")
    a("s_lshl_b32 s21, s21, 2")
    a("s_and_b32 s30, s29, 3")
    a("s_add_u32 s21, s21, s30")
    a("s_lshr_b32 s3, s21, 3")
    a("s_and_b32 s21, s21, 7")
    a("v_and_b32 v1, 63, v0")
    a("v_lshrrev_b32 v2, 6, v0")
    a("v_readfirstlane_b32 s27, v2")
    a("v_lshrrev_b32 v2, 4, v1")
    a("v_and_b32 v3, 15, v1")
    a("s_waitcnt lgkmcnt(0)")
    srd(a, 4, 64, 65, 2621440)
    a("s_cmp_eq_u32 s3, 0")
    a("s_cselect_b32 s8, s66, s74")
    a("s_cselect_b32 s9, s67, s75")
    a("s_mov_b32 s10, 2457600")
    a("s_mov_b32 s11, 0x00020000")
    srd(a, 12, 84, 85, 0x10000000)
    srd(a, 16, 82, 83, 256)
    a("s_lshl_b32 s28, s20, 7")
    a("s_lshl_b32 s29, s27, 5")
    a("s_add_u32 s28, s28, s29")
    a("v_add_u32 v4, s28, v3")
    a("v_mul_u32_u24 v4, 1280, v4")
    a("v_lshlrev_b32 v14, 4, v2")
    a("v_add_u32 v4, v4, v14")
    a("s_lshr_b32 s28, s27, 1")
    a("s_mul_i32 s24, s28, 122880")
    a("s_and_b32 s28, s27, 1")
    a("s_add_u32 s28, s28, 1")
    a("s_mul_i32 s28, s28, 1280")
    a("s_add_u32 s24, s24, s28")
    a("s_mul_i32 s28, s21, 160")
    a("s_add_u32 s24, s24, s28")
    a("s_mul_i32 s25, s27, 122880")
    a("s_add_u32 s25, s25, s28")
    a("s_mul_i32 s26, s27, 5120")
    for i5 in range(5):
        dma_row_decode(a, 14, 15, i5, 16)
        a("v_lshrrev_b32 v16, 4, v14")
        a("v_bfe_u32 v17, v14, 2, 2")
        a("v_and_b32 v18, 3, v14")
        a("v_lshlrev_b32 v17, 3, v17")
        a("v_lshl_add_u32 v17, v16, 2, v17")
        a("v_add_u32 v17, v17, v18")
        a("v_mul_u32_u24 v17, 3840, v17")
        a("v_lshl_add_u32 v%d, v15, 4, v17" % (5 + i5))
    a("s_mov_b32 s30, 20480")
    def xloads(lo, hi):
        for ks in range(lo, hi):
            a("buffer_load_dwordx4 %s, v4, s[4:7], 0 offen offset:%d" % (ar((ks * 2) * 4), ks * 64), tag=("x", ks))
            a("buffer_load_dwordx4 %s, v4, s[4:7], s30 offen offset:%d" % (ar((ks * 2 + 1) * 4), ks * 64), tag=("x", ks))
    k1_dma_unit(a, 0)
    xloads(0, 2)
    k1_dma_unit(a, 1)
    xloads(2, 4)
    k1_dma_unit(a, 2)
    xloads(4, 6)
    k1_dma_unit(a, 3)
    xloads(6, 20)
    stamp(a, 0)
    a("v_lshrrev_b32 v14, 2, v3")
    a("v_and_b32 v15, 3, v3")
    a("v_lshl_add_u32 v14, v2, 2, v14")
    a("v_mul_u32_u24 v14, 160, v14")
    a("v_lshl_add_u32 v10, v15, 3, v14")
    a("v_add_u32 v11, 40960, v10")
    a("v_mul_u32_u24 v15, 40, v15")
    a("v_add_u32 v12, v14, v15")
    a("v_add_u32 v13, 40960, v12")
    a("s_mov_b32 s31, 0x%x" % L2E)
    a("s_mov_b32 s30, 0")
    a("s_cmp_eq_u32 s3, 0")
    a("s_cbranch_scc0 L_k1_B")
    vm_snapshot = list(a.vm)

    a("s_cmp_lg_u32 s27, 0")
    a("s_cbranch_scc1 L_a_nz")
    a("v_mov_b32 v16, 0"); a("v_mov_b32 v17, 0"); a("v_mov_b32 v18, 0"); a("v_mov_b32 v19, 0")
    a("v_lshlrev_b32 v15, 4, v1")
    a("s_lshl_b32 s28, s21, 14")
    a("s_lshl_b32 s29, s20, 10")
    a("s_add_u32 s28, s28, s29")
    a("buffer_store_dwordx4 v[16:19], v15, s[12:15], s28 offen sc0 sc1")
    a.vm.pop()
    a("s_waitcnt vmcnt(0)")
    a("v_mov_b32 v16, 1")
    a("v_mov_b32 v15, 0")
    a("s_lshl_b32 s28, s21, 2")
    a("s_mov_b64 exec, 1")
    a("buffer_atomic_add v16, v15, s[16:19], s28 offen")
    a.vm.pop()
    a("s_mov_b64 exec, -1")
    a.label("L_a_nz")
    srd(a, 32, 68, 69, 25600)
    a("s_mul_i32 s28, s21, 3200")
    a("v_lshlrev_b32 v15, 4, v0")
    a("buffer_load_dwordx4 v[16:19], v15, s[32:35], s28 offen", tag="wphi")
    a("v_mov_b32 v20, 0"); a("v_mov_b32 v21, 0"); a("v_mov_b32 v22, 0"); a("v_mov_b32 v23, 0")
    a("v_add_u32 v24, %d, v15" % ZR)
    a("v_cmp_gt_u32 vcc, 128, v0")
    a("s_and_saveexec_b64 s[28:29], vcc")
    a("ds_write_b128 v24, v[20:23]")
    a("s_mov_b64 exec, s[28:29]")
    a.wait_vm("wphi")
    a("v_add_u32 v24, %d, v15" % WPHI)
    a("v_cmp_gt_u32 vcc, 200, v0")
    a("s_and_saveexec_b64 s[28:29], vcc")
    a("ds_write_b128 v24, v[16:19]")
    a("s_mov_b64 exec, s[28:29]")
    a("v_lshrrev_b32 v16, 2, v3")
    a("v_and_b32 v17, 3, v3")
    a("v_mul_u32_u24 v18, 800, v2")
    a("v_mul_u32_u24 v16, 40, v16")
    a("v_add3_u32 v18, v18, v16, v16")
    a("v_sub_u32 v18, v18, v16")
    a("v_add_u32 v18, %d, v18" % WPHI)
    a("v_mov_b32 v19, %d" % ZR)
    a("v_cmp_eq_u32 vcc, v17, v2")
    a("v_cndmask_b32 v14, v19, v18, vcc")
    stamp(a, 1)
    a.wait_vm(("dma", 0), "lgkmcnt(0)")
    a("s_barrier")
    for r in k1_reads(0, 1, 0):
        a(r)
    k1_pass(a, 1, 0)
    stamp(a, 2)
    load_wphi_frags(a)
    a("v_lshlrev_b32 v15, 4, v1")
    a("s_mul_i32 s28, s27, 5120")
    a("s_add_u32 s28, s28, %d" % VFR)
    a("v_add_u32 v15, s28, v15")
    for t in range(5):
        for P in range(2):
            b = VA + (P * 5 + t) * 4
            a("v_cvt_pk_bf16_f32 v%d, v%d, v%d" % (16 + t * 4 + 2 * P, b, b + 1))
            a("v_cvt_pk_bf16_f32 v%d, v%d, v%d" % (16 + t * 4 + 2 * P + 1, b + 2, b + 3))
        a("ds_write_b128 v15, %s offset:%d" % (vr(16 + t * 4), t * 1024))
    a("s_waitcnt lgkmcnt(0)")
    a("s_lshl_b32 s28, s27, 5")
    a("v_add_u32 v15, s28, v3")
    a("v_mul_u32_u24 v15, %d, v15" % PHI_STRIDE)
    a("v_mul_u32_u24 v16, 80, v2")
    a("v_add3_u32 v15, v15, v16, v16")
    a("v_sub_u32 v15, v15, v16")
    a("v_add_u32 v15, %d, v15" % PHI)
    for P in range(2):
        phi_stage(a, KA + P * 20, 136 + P * 20, 16 + 0)
        for c in range(5):
            a("ds_write_b128 v15, %s offset:%d" % (vr(136 + P * 20 + 4 * c), P * 16 * PHI_STRIDE + 16 * c))
    a("s_waitcnt lgkmcnt(0)")
    a("s_barrier")
    stamp(a, 3)
    a("v_lshrrev_b32 v16, 2, v3")
    a("v_and_b32 v17, 3, v3")
    a("v_lshl_add_u32 v16, v2, 2, v16")
    a("v_mul_u32_u24 v16, %d, v16" % PHI_STRIDE)
    a("v_lshl_add_u32 v16, v17, 3, v16")
    a("s_mul_i32 s28, s27, 80")
    a("s_add_u32 s28, s28, %d" % PHI)
    a("v_add_u32 v16, s28, v16")
    a("v_lshlrev_b32 v17, 4, v1")
    a("s_lshl_b32 s28, s27, 10")
    a("s_add_u32 s28, s28, %d" % VFR)
    a("v_add_u32 v17, s28, v17")
    for q in range(4):
        a("v_mov_b32 v%d, 0x3f803f80" % (20 + q))
    KVA = 96
    for s4 in range(4):
        pf = 24 + (s4 & 1) * 20
        for ft in range(3):
            for h in range(2):
                a("ds_read_b64_tr_b16 %s, v16 offset:%d" % (vr(pf + ft * 4 + 2 * h, 2), (s4 * 32 + h * 16) * PHI_STRIDE + 32 * ft))
        for tt in range(2):
            a("ds_read_b128 %s, v17 offset:%d" % (vr(pf + 12 + tt * 4), s4 * 5120 + tt * 1024))
        a("s_waitcnt lgkmcnt(0)")
        for ft in range(3):
            for tt in range(3):
                d = vr(KVA + (ft * 3 + tt) * 4)
                A_ = vr(pf + 12 + tt * 4) if tt < 2 else vr(20)
                a("%s %s, %s, %s, %s" % (MF, d, A_, vr(pf + ft * 4), "0" if s4 == 0 else d))
    stamp(a, 4)
    poll(a, "L_pz", 0, 16) if False else None
    a("s_lshl_b32 s30, s21, 2")
    poll(a, "L_pz", 0, 16)
    a("v_mul_u32_u24 v15, 640, v2")
    a("v_lshl_add_u32 v15, v3, 2, v15")
    a("s_lshl_b32 s28, s21, 14")
    a("s_mul_i32 s29, s27, 2720")
    a("s_add_u32 s28, s28, s29")
    a("v_cmp_ge_u32 s[32:33], v2, s27")
    a("v_cmp_le_u32 s[34:35], v2, s27")
    a("v_cmp_gt_u32 s[36:37], 8, v3")
    a("s_and_b64 s[38:39], s[32:33], s[36:37]")
    a("s_and_b64 s[40:41], s[34:35], s[36:37]")
    for tt in range(2):
        for ft in range(3):
            msk = (32 if tt == 0 else 34) if ft < 2 else (38 if tt == 0 else 40)
            a("s_mov_b64 exec, s[%d:%d]" % (msk, msk + 1))
            for r in range(4):
                a("buffer_atomic_add_f32 v%d, v15, s[12:15], s28 offen offset:%d" %
                  (KVA + (ft * 3 + tt) * 4 + r, tt * 2560 + r * 160 + ft * 64), tag="atom")
    a("s_lshl_b32 s28, s21, 14")
    a("s_mul_i32 s29, s27, 3360")
    a("s_add_u32 s28, s28, s29")
    for ft in range(3):
        a("s_mov_b64 exec, 0x%x" % (0xffff if ft < 2 else 0xff))
        a("buffer_atomic_add_f32 v%d, v15, s[12:15], s28 offen offset:%d" % (KVA + (ft * 3 + 2) * 4, 3200 + ft * 64), tag="atom")
    a("s_mov_b64 exec, -1")
    stamp(a, 5)
    def hookA(un):
        if un == 12:
            a("s_cmp_lg_u32 s27, 0")
            a("s_cbranch_scc1 L_a_ns")
            a("v_mov_b32 v240, 1")
            a("v_mov_b32 v241, 0")
            a("s_lshl_b32 s28, s21, 2")
            a("s_mov_b64 exec, 1")
            a("buffer_atomic_add v240, v241, s[16:19], s28 offen offset:32")
            a.vm.pop()
            a("s_mov_b64 exec, -1")
            a.label("L_a_ns")
    enter_pass2(a, 0)
    orig_wait = a.wait_vm
    def wait_vm2(tag, extra=""):
        if tag == ("dma", 12):
            orig_wait("atom")
        return orig_wait(tag, extra)
    a.wait_vm = wait_vm2
    k1_pass(a, 2, 0, hookA)
    a.wait_vm = orig_wait
    stamp(a, 6)
    PQ = 136
    for P in range(2):
        phi_stage(a, QA + P * 20, PQ + P * 20, 16)
    stamp(a, 7)
    a("s_lshl_b32 s30, s21, 2")
    poll(a, "L_pc", 32, 16)
    stamp(a, 8)
    a("v_lshlrev_b32 v15, 4, v0")
    a("s_lshl_b32 s28, s21, 14")
    for q in range(4):
        a("buffer_load_dwordx4 %s, v15, s[12:15], s28 offen offset:%d sc1" % (vr(16 + 4 * q), 0) if q == 0 else
          "buffer_load_dwordx4 %s, v15, s[12:15], s28 offen sc1" % vr(16 + 4 * q), tag="kv")
        a("s_add_u32 s28, s28, 4096")
    a("v_lshlrev_b32 v15, 3, v0")
    a("v_add_u32 v15, %d, v15" % KVB)
    a.wait_vm("kv")
    for q in range(4):
        a("v_cvt_pk_bf16_f32 v%d, v%d, v%d" % (32 + 2 * q, 16 + 4 * q, 17 + 4 * q))
        a("v_cvt_pk_bf16_f32 v%d, v%d, v%d" % (33 + 2 * q, 18 + 4 * q, 19 + 4 * q))
        a("ds_write_b64 v15, %s offset:%d" % (vr(32 + 2 * q, 2), q * 2048))
    a("v_lshrrev_b32 v16, 2, v3")
    a("v_and_b32 v17, 3, v3")
    a("v_mul_u32_u24 v18, 21, v2")
    a("v_add_u32 v19, v18, v17")
    a("v_mul_u32_u24 v19, 80, v19")
    a("v_add_u32 v19, %d, v19" % KVB)
    a("v_mul_u32_u24 v18, 80, v18")
    a("v_add_u32 v18, %d, v18" % (KVB + 1600))
    a("v_mov_b32 v20, %d" % ZR)
    a("v_cmp_eq_u32 vcc, v16, v2")
    a("v_cndmask_b32 v16, v20, v19, vcc")
    a("v_cndmask_b32 v17, v20, v18, vcc")
    a("s_waitcnt lgkmcnt(0)")
    a("s_barrier")
    NUM = 40
    for t in range(6):
        fb = 176 + (t & 1) * 20
        for c in range(5):
            if t < 5:
                a("ds_read_b128 %s, v16 offset:%d" % (vr(fb + 4 * c), 320 * t + 16 * c))
            else:
                a("ds_read_b128 %s, v17 offset:%d" % (vr(fb + 4 * c), 16 * c))
        a("s_waitcnt lgkmcnt(0)")
        for c in range(5):
            for P in range(2):
                d = vr(NUM + (P * 6 + t) * 4)
                a("%s %s, %s, %s, %s" % (MF, d, vr(fb + 4 * c), vr(PQ + P * 20 + 4 * c), "0" if c == 0 else d))
    frag_store_setup(a, WS_OA)
    for P in range(2):
        nb = NUM + P * 24
        dn = nb + 20
        a("v_cvt_pk_bf16_f32 v%d, v%d, v%d" % (dn, dn, dn))
        a("v_lshlrev_b32 v%d, 16, v%d" % (dn, dn))
        a("v_add_f32 v%d, 0x358637bd, v%d" % (dn, dn))
        a("v_cvt_pk_bf16_f32 v%d, v%d, v%d" % (dn, dn, dn))
        a("v_lshlrev_b32 v%d, 16, v%d" % (dn, dn))
        a("v_rcp_f32 v%d, v%d" % (dn, dn))
        op = 100 + P * 12
        for m in range(10):
            a("v_cvt_pk_bf16_f32 v%d, v%d, v%d" % (op + m, nb + 2 * m, nb + 2 * m + 1))
        for m in range(10):
            a("v_lshlrev_b32 v%d, 16, v%d" % (nb + 2 * m, op + m))
            a("v_and_b32 v%d, 0xffff0000, v%d" % (nb + 2 * m + 1, op + m))
        for m in range(20):
            a("v_mul_f32 v%d, v%d, v%d" % (nb + m, nb + m, dn))
        for m in range(10):
            a("v_cvt_pk_bf16_f32 v%d, v%d, v%d" % (op + m, nb + 2 * m, nb + 2 * m + 1))
        store_frag(a, op, P)
    stamp(a, 9)
    a("s_endpgm")

    a.label("L_k1_B")
    a.vm = list(vm_snapshot)
    a("s_lshl_b32 s28, s20, 7")
    a("s_sub_u32 s28, s28, 16")
    a("v_add_u32 v14, s28, v3")
    a("v_mul_i32_i24 v14, 1280, v14")
    a("v_lshl_add_u32 v14, v2, 4, v14")
    a("s_lshl_b32 s28, s27, 6")
    for q in range(5):
        a("buffer_load_dwordx4 %s, v14, s[4:7], s28 offen offset:%d" % (ar(160 + 4 * q), q * 256), tag=("xh", q))
    for q in range(40):
        a("v_mov_b32 v%d, 0" % (HA + q))
    srd(a, 32, 78, 79, 1280)
    a("v_lshrrev_b32 v14, 4, v0")
    a("s_lshl_b32 s28, s20, 7")
    a("s_lshl_b32 s29, s21, 4")
    a("s_add_u32 s28, s28, s29")
    a("v_add_u32 v14, s28, v14")
    a("v_mul_u32_u24 v15, 1280, v14")
    a("v_lshl_add_u32 v15, v3, 4, v15")
    a("v_lshlrev_b32 v16, 4, v3")
    for c in range(5):
        a("buffer_load_dwordx4 %s, v15, s[4:7], 0 offen offset:%d" % (vr(20 + 4 * c), 256 * c), tag="gx")
        a("buffer_load_dwordx4 %s, v16, s[32:35], 0 offen offset:%d" % (vr(40 + 4 * c), 256 * c), tag="gx")
    a.wait_vm("gx")
    a("v_mov_b32 v60, 0")
    a("v_mov_b32 v61, 0")
    for m in range(20):
        a("v_lshlrev_b32 v62, 16, v%d" % (20 + m))
        a("v_and_b32 v63, 0xffff0000, v%d" % (20 + m))
        a("v_lshlrev_b32 v64, 16, v%d" % (40 + m))
        a("v_and_b32 v65, 0xffff0000, v%d" % (40 + m))
        a("v_mul_f32 v62, v62, v64")
        a("v_mul_f32 v63, v63, v65")
        a("v_cvt_pk_bf16_f32 v62, v62, v63")
        a("v_lshlrev_b32 v63, 16, v62")
        a("v_and_b32 v62, 0xffff0000, v62")
        a("v_add_f32 v60, v60, v63")
        a("v_add_f32 v61, v61, v62")
    a("v_add_f32 v60, v60, v61")
    for sh in (8, 4, 2, 1):
        a("v_add_f32_dpp v60, v60, v60 row_ror:%d row_mask:0xf bank_mask:0xf" % sh)
    a("v_cvt_pk_bf16_f32 v60, v60, v60")
    a("v_lshlrev_b32 v60, 16, v60")
    a("v_mul_f32 v60, s31, v60")
    a("v_exp_f32 v60, -v60")
    a("v_add_f32 v60, 1.0, v60")
    a("v_rcp_f32 v60, v60")
    a("v_cvt_pk_bf16_f32 v60, v60, v60")
    a("v_lshlrev_b32 v60, 16, v60")
    a("v_lshlrev_b32 v14, 2, v14")
    a("v_cmp_eq_u32 vcc, 0, v3")
    a("s_and_saveexec_b64 s[28:29], vcc")
    a("buffer_store_dword v60, v14, s[12:15], 0 offen offset:0" .replace("offset:0", "") .replace("s[12:15], 0", "s[12:15], s36") if False else
      "s_mov_b32 s36, 0x%x" % WS_G)
    a("buffer_store_dword v60, v14, s[12:15], s36 offen", tag="gst")
    a("s_mov_b64 exec, s[28:29]")
    stamp(a, 10)
    a("v_lshlrev_b32 v14, 2, v2")
    a("v_sub_u32 v14, v3, v14")
    for r in range(4):
        a("v_subrev_u32 v15, %d, v14" % r)
        a("v_and_b32 v16, 1, v15")
        a("v_cmp_eq_u32 vcc, 0, v16")
        a("v_cmp_le_i32 s[28:29], 0, v15")
        a("s_and_b64 s[%d:%d], vcc, s[28:29]" % (32 + 2 * r, 33 + 2 * r))
        a("v_cmp_ge_i32 s[28:29], -2, v15")
        a("s_and_b64 s[%d:%d], vcc, s[28:29]" % (40 + 2 * r, 41 + 2 * r))
    a("s_or_b32 s28, s20, s27")
    a("s_cmp_eq_u32 s28, 0")
    for r in range(4):
        a("s_cselect_b64 s[%d:%d], 0, s[%d:%d]" % (48 + 2 * r, 49 + 2 * r, 40 + 2 * r, 41 + 2 * r))
    a("s_mov_b32 s56, 0xffff0000"); a("s_mov_b32 s57, -1")
    a("s_mov_b32 s58, 0"); a("s_mov_b32 s59, -1")
    a("s_mov_b32 s60, 0"); a("s_mov_b32 s61, 0xffff0000")
    stamp(a, 1)
    a.wait_vm(("dma", 0), "lgkmcnt(0)")
    a("s_barrier")
    for r in k1_reads(0, 1, 1):
        a(r)
    k1_pass(a, 1, 1)
    stamp(a, 2)
    KP = 176
    VP = 56
    for P in range(2):
        for t in range(5):
            b = KA + (P * 5 + t) * 4
            a("v_cvt_pk_bf16_f32 v%d, v%d, v%d" % (KP + (P + 1) * 10 + 2 * t, b, b + 1))
            a("v_cvt_pk_bf16_f32 v%d, v%d, v%d" % (KP + (P + 1) * 10 + 2 * t + 1, b + 2, b + 3))
            b = VA + (P * 5 + t) * 4
            a("v_cvt_pk_bf16_f32 v%d, v%d, v%d" % (VP + t * 6 + 2 + 2 * P, b, b + 1))
            a("v_cvt_pk_bf16_f32 v%d, v%d, v%d" % (VP + t * 6 + 3 + 2 * P, b + 2, b + 3))
    a("v_lshlrev_b32 v15, 3, v1")
    a("s_mul_i32 s28, s27, 5120")
    a("s_add_u32 s28, s28, %d" % EXC)
    a("v_add_u32 v15, s28, v15")
    for t in range(5):
        a("ds_write_b64 v15, %s offset:%d" % (vr(KP + 20 + 2 * t, 2), t * 512))
        a("ds_write_b64 v15, %s offset:%d" % (vr(VP + t * 6 + 4, 2), 2560 + t * 512))
    a("v_lshlrev_b32 v14, 4, v1")
    a("s_cmp_eq_u32 s27, 0")
    a("s_cbranch_scc1 L_b_w0")
    a("s_mul_i32 s28, s27, 10240")
    a("s_add_u32 s28, s28, %d" % (HALO - 10240))
    a("v_add_u32 v16, s28, v14")
    for j in range(10):
        a("ds_write_b128 v16, %s offset:%d" % (vr(HA + 4 * j), j * 1024))
    a.label("L_b_w0")
    a("s_waitcnt lgkmcnt(0)")
    a("s_barrier")
    a("s_cmp_eq_u32 s27, 0")
    a("s_cbranch_scc0 L_b_nw0")
    a("v_add_u32 v16, %d, v14" % HALO)
    for ww in range(3):
        for j in range(10):
            a("ds_read_b128 %s, v16 offset:%d" % (vr(96 + 4 * j), ww * 10240 + j * 1024))
        a("s_waitcnt lgkmcnt(0)")
        for q in range(40):
            a("v_add_f32 v%d, v%d, v%d" % (HA + q, HA + q, 96 + q))
    for t in range(5):
        b = HA + t * 4
        a("v_cvt_pk_bf16_f32 v%d, v%d, v%d" % (KP + 2 * t, b, b + 1))
        a("v_cvt_pk_bf16_f32 v%d, v%d, v%d" % (KP + 2 * t + 1, b + 2, b + 3))
        b = HA + 20 + t * 4
        a("v_cvt_pk_bf16_f32 v%d, v%d, v%d" % (VP + t * 6, b, b + 1))
        a("v_cvt_pk_bf16_f32 v%d, v%d, v%d" % (VP + t * 6 + 1, b + 2, b + 3))
    a("s_branch L_b_j")
    a.label("L_b_nw0")
    a("v_subrev_u32 v15, 5120, v15")
    for t in range(5):
        a("ds_read_b64 %s, v15 offset:%d" % (vr(KP + 2 * t, 2), t * 512))
        a("ds_read_b64 %s, v15 offset:%d" % (vr(VP + t * 6, 2), 2560 + t * 512))
    a("s_waitcnt lgkmcnt(0)")
    a.label("L_b_j")
    stamp(a, 5)
    enter_pass2(a, 1)
    k1_pass(a, 2, 1)
    stamp(a, 6)
    QP = 136
    for P in range(2):
        for t in range(5):
            b = QA + (P * 5 + t) * 4
            a("v_cvt_pk_bf16_f32 v%d, v%d, v%d" % (QP + P * 10 + 2 * t, b, b + 1))
            a("v_cvt_pk_bf16_f32 v%d, v%d, v%d" % (QP + P * 10 + 2 * t + 1, b + 2, b + 3))
    a("v_mov_b32 v14, 0xf149f2ca")
    a("s_mov_b32 s30, 0x%x" % SCALE)
    frag_store_setup(a, WS_OB)
    for P in range(2):
        OACC = 96
        for h in range(4):
            QM = 16 + h * 4
            for q in range(2):
                src = QP + P * 10 + 2 * h + q
                if h == 0:
                    a("v_mov_b32 v%d, v%d" % (QM + q, src))
                else:
                    a("v_cndmask_b32 v%d, 0, v%d, s[%d:%d]" % (QM + q, src, 54 + 2 * h, 55 + 2 * h))
                src = QP + P * 10 + 2 * h + 2 + q
                if h == 3:
                    a("v_mov_b32 v%d, v%d" % (QM + 2 + q, src))
                else:
                    a("v_cndmask_b32 v%d, v%d, 0, s[%d:%d]" % (QM + 2 + q, src, 56 + 2 * h, 57 + 2 * h))
        for h in range(4):
            QM = 16 + h * 4
            SB = 206 + h * 8
            a("%s %s, %s, %s, 0" % (MF, vr(SB), vr(KP + P * 10 + 2 * h), vr(QM)))
            a("%s %s, %s, %s, 0" % (MF, vr(SB + 4), vr(KP + (P + 1) * 10 + 2 * h), vr(QM)))
        H = range(4)
        def SBr(h): return 206 + h * 8
        def TM(h): return 32 + h * 6
        for rnd in range(2):
            for h in H:
                for m in range(4):
                    a("v_cvt_pk_bf16_f32 v%d, v%d, v%d" % (TM(h) + m, SBr(h) + 2 * m, SBr(h) + 2 * m + 1))
            for h in H:
                for m in range(4):
                    a("v_lshlrev_b32 v%d, 16, v%d" % (SBr(h) + 2 * m, TM(h) + m))
                    a("v_and_b32 v%d, 0xffff0000, v%d" % (SBr(h) + 2 * m + 1, TM(h) + m))
            if rnd == 0:
                for h in H:
                    for m in range(8):
                        a("v_mul_f32 v%d, s30, v%d" % (SBr(h) + m, SBr(h) + m))
        for h in H:
            for r in range(4):
                mp = (48 if P == 0 else 40) + 2 * r
                a("v_cndmask_b32 v%d, v14, v%d, s[%d:%d]" % (SBr(h) + r, SBr(h) + r, mp, mp + 1))
                a("v_cndmask_b32 v%d, v14, v%d, s[%d:%d]" % (SBr(h) + 4 + r, SBr(h) + 4 + r, 32 + 2 * r, 33 + 2 * r))
        for h in H:
            s = SBr(h); mx = TM(h) + 4
            a("v_max3_f32 v%d, v%d, v%d, v%d" % (mx, s, s + 1, s + 2))
            a("v_max3_f32 v%d, v%d, v%d, v%d" % (mx, mx, s + 3, s + 4))
            a("v_max3_f32 v%d, v%d, v%d, v%d" % (mx, mx, s + 5, s + 6))
            a("v_max_f32 v%d, v%d, v%d" % (mx, mx, s + 7))
        def xred(op):
            for sw in ("v_permlane16_swap_b32", "v_permlane32_swap_b32"):
                for h in H:
                    a("v_mov_b32 v%d, v%d" % (TM(h) + 5, TM(h) + 4))
                for h in H:
                    a("%s v%d, v%d" % (sw, TM(h) + 4, TM(h) + 5))
                for h in H:
                    a("%s v%d, v%d, v%d" % (op, TM(h) + 4, TM(h) + 4, TM(h) + 5))
        xred("v_max_f32")
        for h in H:
            a("v_mul_f32 v%d, s31, v%d" % (TM(h) + 4, TM(h) + 4))
        for h in H:
            for m in range(8):
                a("v_fma_f32 v%d, v%d, s31, -v%d" % (SBr(h) + m, SBr(h) + m, TM(h) + 4))
        for h in H:
            for m in range(8):
                a("v_exp_f32 v%d, v%d" % (SBr(h) + m, SBr(h) + m))
        for h in H:
            s = SBr(h); sm = TM(h) + 4
            a("v_add_f32 v%d, v%d, v%d" % (sm, s, s + 1))
            for m in range(2, 8):
                a("v_add_f32 v%d, v%d, v%d" % (sm, sm, s + m))
        xred("v_add_f32")
        for h in H:
            a("v_rcp_f32 v%d, v%d" % (TM(h) + 4, TM(h) + 4))
        for h in H:
            for m in range(8):
                a("v_mul_f32 v%d, v%d, v%d" % (SBr(h) + m, SBr(h) + m, TM(h) + 4))
        for h in H:
            for m in range(4):
                a("v_cvt_pk_bf16_f32 v%d, v%d, v%d" % (TM(h) + m, SBr(h) + 2 * m, SBr(h) + 2 * m + 1))
        for h in H:
            for tt in range(2):
                t = h + tt
                a("%s %s, %s, %s, 0" % (MF, vr(OACC + (h * 2 + tt) * 4), vr(VP + t * 6 + 2 * P), vr(TM(h))))
        OP = 160 + P * 10
        for t in range(5):
            if t == 0:
                src = OACC + 0
            elif t == 4:
                src = OACC + (3 * 2 + 1) * 4
            else:
                src = OACC + (t * 2) * 4
                oth = OACC + ((t - 1) * 2 + 1) * 4
                for r in range(4):
                    a("v_cndmask_b32 v%d, v%d, v%d, s[%d:%d]" % (src + r, oth + r, src + r, 54 + 2 * t, 55 + 2 * t))
            a("v_cvt_pk_bf16_f32 v%d, v%d, v%d" % (OP + 2 * t, src, src + 1))
            a("v_cvt_pk_bf16_f32 v%d, v%d, v%d" % (OP + 2 * t + 1, src + 2, src + 3))
        store_frag(a, OP, P)
    stamp(a, 9)
    a.label("L_k1_end")
    a("s_endpgm")

K2_NBUF = 7
K2_SCR = K2_NBUF * 20480

def k2_dma_unit(a, u):
    buf = u % K2_NBUF
    def kk(ks):
        q5, m = divmod(ks, 5)
        if m == 2:
            return 160 * q5, 2
        hgp = 2 * q5 + (1 if m >= 3 else 0)
        c = m if m < 2 else m - 3
        return 80 * hgp, c
    k00, k10 = kk(2 * u); k01, k11 = kk(2 * u + 1)
    a("s_cmp_eq_u32 s24, 0")
    a("s_cselect_b32 s28, %d, %d" % (k00 // 16, k01 // 16))
    a("s_cselect_b32 s29, %d, %d" % (k10, k11))
    a("s_lshl_b32 s28, s28, 4")
    a("s_mul_i32 s29, s29, s25")
    a("s_add_u32 s28, s28, s29")
    a("s_mul_i32 s28, s28, 1280")
    a("s_add_u32 s28, s28, s23")
    pat = 5
    if u in (1, 6): pat = 10
    if u in (3, 8): pat = 15
    for i5 in range(5):
        a("s_add_u32 m0, s26, %d" % (buf * 20480 + i5 * 1024))
        a("buffer_load_dwordx4 v%d, s[8:11], s28 offen lds" % (pat + i5), tag=("dma", u))

def k2_reads(ks):
    u = ks >> 1; par = ks & 1; buf = u % K2_NBUF
    st = ks & 1
    out = []
    img = buf * 20480 + par * 5120
    base = 20 + img // 61440
    img -= (img // 61440) * 61440
    for t in range(5):
        f = 24 + st * 20 + t * 4
        for h in range(2):
            out.append("ds_read_b64_tr_b16 %s, v%d offset:%d" % (vr(f + 2 * h, 2), base, img + h * 2560 + 32 * t))
    return out

def gen_k2(a):
    a.raw(".globl k2_kernel\n.p2align 8\n.type k2_kernel,@function\nk2_kernel:")
    a.hist = []; a.vm = []
    a("s_cmp_ge_u32 s2, 256")
    a("s_cbranch_scc1 L_k2_end")
    load_kernargs(a)
    a("s_and_b32 s28, s2, 7")
    a("s_lshr_b32 s29, s2, 3")
    a("s_lshr_b32 s20, s28, 1")
    a("s_lshl_b32 s20, s20, 3")
    a("s_lshr_b32 s30, s29, 2")
    a("s_add_u32 s20, s20, s30")
    a("s_and_b32 s21, s28, 1")
    a("s_lshl_b32 s21, s21, 2")
    a("s_and_b32 s30, s29, 3")
    a("s_add_u32 s21, s21, s30")
    a("v_and_b32 v1, 63, v0")
    a("v_lshrrev_b32 v2, 6, v0")
    a("v_readfirstlane_b32 s27, v2")
    a("v_lshrrev_b32 v2, 4, v1")
    a("v_and_b32 v3, 15, v1")
    a("s_lshr_b32 s3, s27, 1")
    a("s_and_b32 s24, s27, 1")
    a("s_waitcnt lgkmcnt(0)")
    a("s_cmp_eq_u32 s3, 0")
    a("s_cselect_b32 s8, s70, s76")
    a("s_cselect_b32 s9, s71, s77")
    a("s_mov_b32 s10, 819200")
    a("s_mov_b32 s11, 0x00020000")
    a("s_cselect_b32 s25, 8, 32")
    a("s_mov_b32 s28, 0x%x" % WS_OA)
    a("s_mov_b32 s29, 0x%x" % WS_OB)
    a("s_cselect_b32 s22, s28, s29")
    srd(a, 12, 84, 85, 0x10000000)
    srd(a, 16, 80, 81, 2621440)
    a("s_mul_i32 s23, s21, 160")
    a("s_mul_i32 s26, s27, 5120")
    a("s_lshl_b32 s28, s20, 2")
    a("s_lshl_b32 s29, s24, 1")
    a("s_add_u32 s28, s28, s29")
    a("s_mul_i32 s28, s28, 20480")
    a("s_add_u32 s22, s22, s28")
    a("s_add_u32 s30, s22, 20480")
    a("v_lshlrev_b32 v4, 4, v1")
    for i5 in range(5):
        dma_row_decode(a, 24, 25, i5, 26)
        a("v_lshrrev_b32 v26, 4, v24")
        a("v_bfe_u32 v27, v24, 2, 2")
        a("v_and_b32 v28, 3, v24")
        a("v_mul_u32_u24 v29, 20, v27")
        a("v_lshlrev_b32 v30, 2, v27")
        a("s_cmp_eq_u32 s3, 0")
        a("s_cselect_b64 vcc, -1, 0")
        a("v_cndmask_b32 v29, v30, v29, vcc")
        a("v_add_u32 v29, v29, v28")
        a("v_lshlrev_b32 v30, 2, v26")
        a("v_lshlrev_b32 v31, 4, v26")
        a("v_cndmask_b32 v30, v31, v30, vcc")
        a("v_add_u32 v30, v30, v29")
        a("v_mul_u32_u24 v31, 80, v26")
        a("v_add_u32 v31, v31, v29")
        a("v_mul_u32_u24 v30, 1280, v30")
        a("v_mul_u32_u24 v31, 1280, v31")
        a("v_lshl_add_u32 v%d, v25, 4, v30" % (5 + i5))
        a("v_lshl_add_u32 v31, v25, 4, v31")
        a("s_cmp_eq_u32 s24, 0")
        a("s_cselect_b64 vcc, -1, 0")
        a("v_cndmask_b32 v%d, v%d, v31, vcc" % (10 + i5, 5 + i5))
        a("v_cndmask_b32 v%d, v31, v%d, vcc" % (15 + i5, 5 + i5))
    def oloads(lo, hi):
        for ks in range(lo, hi):
            off = ks * 1024
            so = "s22"
            a("s_add_u32 s28, s22, %d" % off)
            a("s_add_u32 s29, s30, %d" % off)
            a("buffer_load_dwordx4 %s, v4, s[12:15], s28 offen" % ar((ks * 2) * 4), tag=("x", ks))
            a("buffer_load_dwordx4 %s, v4, s[12:15], s29 offen" % ar((ks * 2 + 1) * 4), tag=("x", ks))
    k2_dma_unit(a, 0)
    oloads(0, 2)
    k2_dma_unit(a, 1)
    oloads(2, 4)
    k2_dma_unit(a, 2)
    oloads(4, 6)
    k2_dma_unit(a, 3)
    oloads(6, 12)
    k2_dma_unit(a, 4)
    oloads(12, 16)
    k2_dma_unit(a, 5)
    oloads(16, 20)
    k2_dma_unit(a, 6)
    a("s_lshl_b32 s28, s20, 6")
    a("s_lshl_b32 s29, s24, 5")
    a("s_add_u32 s28, s28, s29")
    a("v_add_u32 v64, s28, v3")
    a("v_lshlrev_b32 v65, 2, v64")
    a("s_mov_b32 s29, 0x%x" % WS_G)
    a("buffer_load_dword v66, v65, s[12:15], s29 offen", tag="g")
    a("buffer_load_dword v67, v65, s[12:15], s29 offen offset:64", tag="g")
    stamp(a, 0, 1)
    a("v_lshrrev_b32 v24, 2, v3")
    a("v_and_b32 v25, 3, v3")
    a("v_lshl_add_u32 v24, v2, 2, v24")
    a("v_mul_u32_u24 v24, 160, v24")
    a("v_lshl_add_u32 v24, v25, 3, v24")
    a("s_mul_i32 s28, s3, 10240")
    a("v_add_u32 v20, s28, v24")
    a("v_add_u32 v21, 61440, v20")
    a("v_add_u32 v22, 61440, v21")
    ACC = 72
    a.wait_vm(("dma", 0))
    a("s_barrier")
    for r in k2_reads(0):
        a(r)
    for ks in range(20):
        a("s_waitcnt lgkmcnt(0)")
        a.wait_vm(("x", ks))
        nxt = ks + 1
        rd = []
        if nxt < 20:
            if nxt % 2 == 0:
                un = nxt // 2
                a.wait_vm(("dma", un))
                a("s_barrier")
                if un - 1 + K2_NBUF < 10:
                    k2_dma_unit(a, un - 1 + K2_NBUF)
            rd = k2_reads(nxt)
        mf = []
        st = ks & 1
        for t in range(5):
            for P in range(2):
                acc = vr(ACC + (P * 5 + t) * 4)
                mf.append("%s %s, %s, %s, %s" % (MF, acc, vr(24 + st * 20 + t * 4), ar((ks * 2 + P) * 4), "0" if ks == 0 else acc))
        interleave(a, mf, rd)
    stamp(a, 1, 1)
    a("v_lshlrev_b32 v24, 4, v1")
    a("s_mul_i32 s28, s24, 10240")
    a("s_add_u32 s28, s28, %d" % K2_SCR)
    a("v_add_u32 v24, s28, v24")
    a("s_cmp_eq_u32 s3, 0")
    a("s_cbranch_scc1 L_k2_a")
    for j in range(10):
        a("ds_write_b128 v24, %s offset:%d" % (vr(ACC + 4 * j), j * 1024))
    a("s_waitcnt lgkmcnt(0)")
    a("s_barrier")
    a("s_endpgm")
    a.label("L_k2_a")
    a("s_barrier")
    BB = 112
    for j in range(10):
        a("ds_read_b128 %s, v24 offset:%d" % (vr(BB + 4 * j), j * 1024))
    a.wait_vm("g", "lgkmcnt(0)")
    a("v_mul_u32_u24 v64, 1280, v64")
    a("v_lshl_add_u32 v64, v2, 3, v64")
    a("s_add_u32 s29, s23, 20480")
    for P in range(2):
        gq = 66 + P
        a("v_sub_f32 v68, 1.0, v%d" % gq)
        a("v_cvt_pk_bf16_f32 v68, v68, v68")
        a("v_lshlrev_b32 v68, 16, v68")
        for t in range(5):
            A0 = ACC + (P * 5 + t) * 4
            B0 = BB + (P * 5 + t) * 4
            for X in (A0, B0):
                a("v_cvt_pk_bf16_f32 v28, v%d, v%d" % (X, X + 1))
                a("v_cvt_pk_bf16_f32 v29, v%d, v%d" % (X + 2, X + 3))
                a("v_lshlrev_b32 v%d, 16, v28" % X)
                a("v_and_b32 v%d, 0xffff0000, v28" % (X + 1))
                a("v_lshlrev_b32 v%d, 16, v29" % (X + 2))
                a("v_and_b32 v%d, 0xffff0000, v29" % (X + 3))
                mul = gq if X == A0 else 68
                for r in range(4):
                    a("v_mul_f32 v%d, v%d, v%d" % (X + r, X + r, mul))
                a("v_cvt_pk_bf16_f32 v28, v%d, v%d" % (X, X + 1))
                a("v_cvt_pk_bf16_f32 v29, v%d, v%d" % (X + 2, X + 3))
                a("v_lshlrev_b32 v%d, 16, v28" % X)
                a("v_and_b32 v%d, 0xffff0000, v28" % (X + 1))
                a("v_lshlrev_b32 v%d, 16, v29" % (X + 2))
                a("v_and_b32 v%d, 0xffff0000, v29" % (X + 3))
            for r in range(4):
                a("v_add_f32 v%d, v%d, v%d" % (A0 + r, A0 + r, B0 + r))
            a("v_cvt_pk_bf16_f32 v%d, v%d, v%d" % (B0, A0, A0 + 1))
            a("v_cvt_pk_bf16_f32 v%d, v%d, v%d" % (B0 + 1, A0 + 2, A0 + 3))
            a("buffer_store_dwordx2 %s, v64, s[16:19], %s offen offset:%d" % (vr(B0, 2), "s23" if P == 0 else "s29", t * 32))
    stamp(a, 2, 1)
    a.label("L_k2_end")
    a("s_endpgm")

HEADER = open("cdna_kernels/%s.s.ref" % NAME).read().split("; Override launch")[0]

def main(path):
    a = Asm()
    a.raw(HEADER.rstrip())
    a.raw("; @launch kernel=k1_kernel grid=(256,1,1) block=(256,1,1) lds=163840")
    a.raw("; @launch kernel=k2_kernel grid=(256,1,1) block=(256,1,1) lds=163840")
    a.raw('.amdgcn_target "amdgcn-amd-amdhsa--gfx950"\n.text')
    gen_k1(a)
    gen_k2(a)
    a.raw('.section .rodata,"a"')
    for k in ("k1_kernel", "k2_kernel"):
        a.raw(""".p2align 6
.amdhsa_kernel %s
  .amdhsa_next_free_vgpr 512
  .amdhsa_next_free_sgpr 102
  .amdhsa_accum_offset 256
  .amdhsa_group_segment_fixed_size 0
  .amdhsa_kernarg_size 88
  .amdhsa_user_sgpr_count 2
  .amdhsa_user_sgpr_kernarg_segment_ptr 1
  .amdhsa_system_sgpr_workgroup_id_x 1
.end_amdhsa_kernel""" % k)
    open(path, "w").write(a.text())
    print("instructions:", a.n_ins)

if __name__ == "__main__":
    if len(sys.argv) > 2 and sys.argv[2] == "stamps":
        STAMPS = True
    main(sys.argv[1] if len(sys.argv) > 1 else "cdna_kernels/%s.s" % NAME)
```

```python
import re

TRANS = ("v_exp_f32", "v_log_f32", "v_rcp_f32", "v_rsq_f32", "v_sqrt_f32", "v_sin_f32", "v_cos_f32")
_tok = re.compile(r"(?<![\w.])([vas])(?:\[(\d+):(\d+)\]|(\d+))(?![\w])")

def regs_of(tok):
    out = []
    t = tok.strip()
    t = t.lstrip("-")
    if t.startswith("abs(") or t.startswith("|"):
        t = t.replace("abs(", "").replace(")", "").replace("|", "")
    if t in ("vcc", "exec", "m0", "scc"):
        return [t]
    if t in ("vcc_lo", "vcc_hi"):
        return ["vcc"]
    if t in ("exec_lo", "exec_hi"):
        return ["exec"]
    m = _tok.fullmatch(t)
    if m:
        c = m.group(1)
        if m.group(4) is not None:
            out.append(c + m.group(4))
        else:
            for i in range(int(m.group(2)), int(m.group(3)) + 1):
                out.append(c + str(i))
    return out

class Ins:
    __slots__ = ("op", "kind", "wr", "rd", "srcc", "states", "wide", "trans", "text", "mfma_d")

class Asm:
    def __init__(self):
        self.lines = []
        self.hist = []
        self.vm = []
        self.vm_known = 0
        self.n_ins = 0
        self.bg = []
        self.bg_every = 0
        self._bg_cnt = 0
        self._in_bg = False

    def raw(self, s):
        self.lines.append(s)

    def comment(self, s):
        self.lines.append("    ; " + s)

    def label(self, name):
        self.flush_hazards()
        self.lines.append(name + ":")

    def flush_hazards(self):
        need = 0
        d = 0
        for j in reversed(self.hist):
            if j.kind == "mfma":
                need = max(need, 8 - d)
            elif j.kind == "valu":
                need = max(need, 5 - d)
            elif j.kind == "salu":
                need = max(need, 1 - d)
            elif j.wide:
                need = max(need, 2 - d)
            d += j.states
            if d > 12:
                break
        if need > 0:
            self._nop(need)
        self.hist = []

    def _nop(self, n):
        while n > 0:
            k = min(n, 16)
            self.lines.append("    s_nop %d" % (k - 1))
            ins = Ins(); ins.op = "s_nop"; ins.kind = "nop"; ins.wr = set(); ins.rd = set(); ins.srcc = set()
            ins.states = k; ins.wide = False; ins.trans = False; ins.text = ""; ins.mfma_d = None
            self.hist.append(ins)
            n -= k

    def _classify(self, op, ops, text):
        ins = Ins()
        ins.op = op; ins.text = text; ins.states = 1; ins.wide = False; ins.trans = False
        ins.srcc = set(); ins.mfma_d = None
        R = [regs_of(o) for o in ops]
        flat = lambda l: [x for y in l for x in y]
        if op.startswith("v_mfma"):
            ins.kind = "mfma"
            ins.wr = set(R[0]); ins.rd = set(flat(R[1:3])); ins.srcc = set(R[3]) if len(R) > 3 else set()
            ins.mfma_d = tuple(R[0])
        elif op.startswith("v_"):
            ins.kind = "valu"
            ins.trans = op.replace("_e32", "").replace("_e64", "") in TRANS
            if op.startswith("v_permlane16_swap") or op.startswith("v_permlane32_swap"):
                ins.wr = set(flat(R[:2])); ins.rd = set(flat(R[:2]))
            elif op.startswith("v_cmp"):
                ins.wr = set(R[0]); ins.rd = set(flat(R[1:]))
            elif re.match(r"v_(add|sub|subrev)_co_u32", op):
                ins.wr = set(flat(R[:2])); ins.rd = set(flat(R[2:]))
            elif re.match(r"v_(addc|subb)_co_u32", op):
                ins.wr = set(flat(R[:2])); ins.rd = set(flat(R[2:]))
            elif op.startswith("v_fmac") or op.startswith("v_dot2c") or op.startswith("v_pk_fmac"):
                ins.wr = set(R[0]); ins.rd = set(flat(R))
            elif op.startswith("v_cndmask") and len(ops) == 3:
                ins.wr = set(R[0]); ins.rd = set(flat(R[1:])) | {"vcc"}
            else:
                ins.wr = set(R[0]); ins.rd = set(flat(R[1:]))
        elif op.startswith("buffer_load") or op.startswith("global_load"):
            ins.kind = "vmem"
            if " lds" in text or "_lds_" in op:
                ins.wr = set(); ins.rd = set(flat(R)) | {"m0"}
            else:
                ins.wr = set(R[0]); ins.rd = set(flat(R[1:]))
        elif op.startswith("buffer_store") or op.startswith("global_store") or "atomic" in op and not op.startswith("s_"):
            ins.kind = "vmem"
            ins.wr = set(); ins.rd = set(flat(R))
            ins.wide = op.endswith("x3") or op.endswith("x4")
        elif op.startswith("buffer_inv") or op.startswith("buffer_wbl2"):
            ins.kind = "vmem"
            ins.wr = set(); ins.rd = set()
        elif op.startswith("ds_read") or op.startswith("ds_bpermute") or op.startswith("ds_swizzle"):
            ins.kind = "ds"
            ins.wr = set(R[0]); ins.rd = set(flat(R[1:]))
        elif op.startswith("ds_"):
            ins.kind = "ds"
            ins.wr = set(); ins.rd = set(flat(R))
        elif op.startswith("s_"):
            ins.kind = "salu"
            if op in ("s_waitcnt", "s_barrier", "s_sleep", "s_setprio", "s_endpgm") or op.startswith("s_cbranch") or op == "s_branch":
                ins.wr = set(); ins.rd = set()
            elif op.startswith("s_cmp"):
                ins.wr = {"scc"}; ins.rd = set(flat(R))
            else:
                ins.wr = set(R[0]) if R else set(); ins.rd = set(flat(R[1:]))
                if "saveexec" in op:
                    ins.wr |= {"exec"}; ins.rd |= {"exec"}
        else:
            raise ValueError("unknown op " + op)
        return ins

    def _need(self, I):
        need = 0
        d = 0
        isv = lambda r: r[0] in "va" and r not in ("vcc",)
        for J in reversed(self.hist):
            n = 0
            if J.kind == "valu":
                wv = {r for r in J.wr if isv(r)}
                ws = {r for r in J.wr if not isv(r)}
                if I.kind == "mfma" and wv & (I.rd | I.srcc):
                    n = max(n, 2)
                if I.kind == "valu":
                    if J.trans and not I.trans and wv & I.rd:
                        n = max(n, 1)
                    if (I.op.startswith("v_readfirstlane") or I.op.startswith("v_readlane")) and wv & I.rd:
                        n = max(n, 1)
                    if I.op.startswith("v_permlane") and wv & I.rd:
                        n = max(n, 2)
                    if ("dpp" in I.text or "row_" in I.text) and wv & I.rd:
                        n = max(n, 2)
                    if ws & I.rd:
                        n = max(n, 4 if (I.op.startswith("v_readlane") or I.op.startswith("v_writelane")) else 2)
                if I.kind == "vmem" and ws & I.rd:
                    n = max(n, 5)
                if I.kind == "salu" and ws & I.rd:
                    n = max(n, 1)
            elif J.kind == "mfma":
                if I.kind == "mfma":
                    if J.wr & I.rd:
                        n = max(n, 8)
                    if J.wr & I.srcc:
                        if tuple(sorted(I.srcc)) != tuple(sorted(J.wr)):
                            n = max(n, 6)
                    if J.wr & I.wr and not (J.wr & I.srcc):
                        n = max(n, 6)
                else:
                    if J.wr & (I.rd | I.wr):
                        n = max(n, 8)
                    if I.kind == "valu" and J.srcc & I.wr:
                        n = max(n, 3)
            elif J.kind == "vmem":
                if J.wide and J.rd & I.wr and I.kind in ("valu", "vmem", "ds", "mfma"):
                    n = max(n, 2)
            elif J.kind == "salu":
                if "m0" in J.wr and "m0" in I.rd:
                    n = max(n, 1)
            need = max(need, n - d)
            d += J.states
            if d > 12:
                break
        return need

    def __call__(self, text, tag=None):
        text = text.strip()
        parts = text.split(None, 1)
        op = parts[0]
        rest = parts[1] if len(parts) > 1 else ""
        ops = []
        for o in rest.split(","):
            o = o.strip()
            if o:
                ops.append(o.split()[0])
        I = self._classify(op, ops, text)
        n = self._need(I)
        if n > 0:
            self._nop(n)
        self.lines.append("    " + text)
        self.hist.append(I)
        if len(self.hist) > 40:
            self.hist = self.hist[-30:]
        self.n_ins += 1
        if I.kind == "vmem":
            self.vm.append(tag)
        if self.bg_every and self.bg and not self._in_bg:
            self._bg_cnt += 1
            if self._bg_cnt >= self.bg_every:
                self._bg_cnt = 0
                self._emit_bg()
        return I

    def _emit_bg(self):
        g = self.bg.pop(0)
        self._in_bg = True
        for t, tg in g:
            self(t, tag=tg)
        self._in_bg = False

    def bg_on(self, every):
        self.bg_every = every; self._bg_cnt = 0

    def bg_off(self):
        self.bg_every = 0

    def bg_flush(self):
        self.bg_every = 0
        while self.bg:
            self._emit_bg()

    def wait_vm(self, tag, extra=""):
        idx = None
        for i in range(len(self.vm) - 1, -1, -1):
            if self.vm[i] == tag:
                idx = i
                break
        if idx is None:
            if extra:
                self("s_waitcnt " + extra)
            return
        n = len(self.vm) - 1 - idx
        n = min(n, 63)
        self(("s_waitcnt vmcnt(%d) " % n + extra).strip())
        self.vm = self.vm[idx + 1:]

    def wait_vm_all(self, extra=""):
        self(("s_waitcnt vmcnt(0) " + extra).strip())
        self.vm = []

    def text(self):
        return "\n".join(self.lines) + "\n"
```

```python
import sys
sys.path.insert(0, "tools")
from emit import Asm

NAME = "gated_mix__linear_kernel_hedgehog__sliding_local_dilated__prompt"
KN = NAME + "_kernel"
WS_KVT = 0
WS_G = 0x20000
WS_OA = 0x40000
WS_OB = 0x40000 + 0x280000
L2E = 0x3fb8aa3b
SCALE = 0x3e64f92e
MF = "v_mfma_f32_16x16x32_bf16"

NB1 = 5
XR = NB1 * 20480
SMALL = XR + 49152
WPHI = SMALL
ZR = SMALL + 3328
KVB = 0
VFR = 81920
PHI = 102400
PHI_STRIDE = 352
HALO = 81920
EXC = 81920 + 30720

STAMPS = False
WS_ST = 0x800000
def stamp(a, n, kern=0):
    if not STAMPS: return
    a("s_memtime s[90:91]")
    a("s_waitcnt lgkmcnt(0)")
    a("v_accvgpr_write_b32 a200, s90")
    a("s_lshl_b32 s92, s2, 2")
    a("s_add_u32 s92, s92, s27")
    a("s_lshl_b32 s92, s92, 7")
    a("s_add_u32 s92, s92, 0x%x" % (WS_ST + kern * 0x20000 + n * 4))
    a("buffer_store_dword a200, off, s[12:15], s92")
    a("s_memrealtime s[90:91]")
    a("s_waitcnt lgkmcnt(0)")
    a("v_accvgpr_write_b32 a201, s90")
    a("buffer_store_dword a201, off, s[12:15], s92 offset:64")
    if n == 0:
        a("v_accvgpr_write_b32 a202, s94")
        a("buffer_store_dword a202, off, s[12:15], s92 offset:124")
        a("s_getreg_b32 s93, hwreg(HW_REG_XCC_ID)")
        a("v_accvgpr_write_b32 a203, s93")
        a("buffer_store_dword a203, off, s[12:15], s92 offset:120")

def vr(b, n=4):
    return "v[%d:%d]" % (b, b + n - 1)
def ar(b, n=4):
    return "a[%d:%d]" % (b, b + n - 1)

def srd(a, d, lo, hi, size):
    a("s_mov_b32 s%d, s%d" % (d, lo))
    a("s_mov_b32 s%d, s%d" % (d + 1, hi))
    a("s_mov_b32 s%d, 0x%x" % (d + 2, size))
    a("s_mov_b32 s%d, 0x00020000" % (d + 3))

def load_kernargs(a):
    a("s_load_dwordx16 s[64:79], s[0:1], 0")
    a("s_load_dwordx4 s[80:83], s[0:1], 64")
    a("s_load_dwordx2 s[84:85], s[0:1], 80")

def dma_row_decode(a, vdst_p, vdst_cc, i5, vt):
    a("v_add_u32 v%d, %d, v1" % (vt, i5 * 64))
    a("v_mul_u32_u24 v%d, 0x199a, v%d" % (vdst_p, vt))
    a("v_lshrrev_b32 v%d, 16, v%d" % (vdst_p, vdst_p))
    a("v_mul_u32_u24 v%d, 10, v%d" % (vdst_cc, vdst_p))
    a("v_sub_u32 v%d, v%d, v%d" % (vdst_cc, vt, vdst_cc))

def poll(a, name, off, target, vt=15):
    a("s_mov_b32 s29, 0x20000")
    a.label(name)
    a("buffer_load_dword v%d, off, s[16:19], s30 offset:%d sc1" % (vt, off))
    a.wait_vm_all()
    a("v_readfirstlane_b32 s28, v%d" % vt)
    a("s_cmp_ge_u32 s28, %d" % target)
    a("s_cbranch_scc1 %s_done" % name)
    a("s_sleep 4")
    a("s_sub_u32 s29, s29, 1")
    a("s_cmp_lg_u32 s29, 0")
    a("s_cbranch_scc1 %s" % name)
    a.label(name + "_done")

def poll1(a, name, off, target, vt=15, inv=False):
    keep = list(a.vm)
    a("s_cmp_lg_u32 s27, 0")
    a("s_cbranch_scc1 %s_w" % name)
    poll(a, name, off, target, vt)
    a.vm = keep
    a.label(name + "_w")
    a("s_barrier")
    if inv:
        a("buffer_inv sc1")

def signal(a, name, off):
    a("s_cmp_lg_u32 s27, 0")
    a("s_cbranch_scc1 %s" % name)
    a("v_mov_b32 v14, 1")
    a("s_lshl_b32 s28, s21, 2")
    a("s_mov_b64 exec, 1")
    a("buffer_atomic_add v14, off, s[16:19], s28 offset:%d" % off)
    a.vm.pop()
    a("s_mov_b64 exec, -1")
    a.label(name)

def interleave(a, mf, rd, rate=2):
    k = 0; m = len(rd)
    for i, x in enumerate(mf):
        a(x)
        for _ in range(rate):
            if k < m:
                a(rd[k]); k += 1
    while k < m:
        a(rd[k]); k += 1

SEQ = [("P", u) for u in range(10)] + [("Q", u) for u in range(5)]
def ubuf(n):
    return n % 5 if n < 10 else (n - 10) % 4
STEPS = []
for n, (kind, u) in enumerate(SEQ):
    if kind == "P":
        for s in range(2): STEPS.append((n, "P", 2 * u + s, s))
    else:
        for s in range(4): STEPS.append((n, "Q", 4 * u + s, s))
KA = 96; VA = 136; QA = 96; HA = 216; WFA = 180
XP2 = 1; XA0 = 14

def k1_dma(a, n):
    kind, u = SEQ[n]
    buf = ubuf(n)
    if kind == "P":
        a("s_add_u32 s28, s24, 0x%x" % (u * 245760))
    else:
        a("s_add_u32 s28, s25, 0x%x" % (u * 491520))
    for i5 in range(5):
        a("s_add_u32 m0, s26, %d" % (buf * 20480 + i5 * 1024))
        a("buffer_load_dwordx4 v%d, s[8:11], s28 offen lds" % (5 + i5), tag=("dma", n))

def tr_base(img, blk):
    grp = img // 61440
    return (12 if blk else 10) + grp, img - grp * 61440

def fset(si):
    return 16 + (si & 1) * 40 if STEPS[si][1] == "P" else 16 + (si % 3) * 20

def k1_reads(si, br):
    n, kind, ks, sub = STEPS[si]
    buf = ubuf(n)
    fs = fset(si)
    out = []
    nt = 10 if kind == "P" else 5
    for j in range(nt):
        t = j % 5
        if kind == "P":
            seg = j // 5
            img = buf * 20480 + (sub * 2 + seg) * 5120
            blk = (seg == 0 and br == 0)
        else:
            img = buf * 20480 + sub * 5120
            blk = (br == 0)
        base, off = tr_base(img, blk)
        co = 8 * t if blk else 32 * t
        for h in range(2):
            out.append("ds_read_b64_tr_b16 %s, v%d offset:%d" % (vr(fs + j * 4 + 2 * h, 2), base, off + h * 2560 + co))
    return out

def k1_mfmas(si):
    n, kind, ks, sub = STEPS[si]
    fs = fset(si)
    out = []
    nt = 10 if kind == "P" else 5
    for j in range(nt):
        t = j % 5
        f = vr(fs + j * 4)
        for P in range(2):
            x = ar((ks * 2 + P) * 4)
            if kind == "Q":
                acc = vr(QA + (P * 5 + t) * 4)
                out.append("%s %s, %s, %s, %s" % (MF, acc, f, x, "0" if ks == 0 else acc))
            elif j < 5:
                acc = vr(KA + (P * 5 + t) * 4)
                out.append("%s %s, %s, %s, %s" % (MF, acc, f, x, "0" if ks == 0 else acc))
            else:
                acc = vr(VA + (P * 5 + t) * 4)
                out.append("%s %s, %s, %s, %s" % (MF, acc, x, f, "0" if ks == 0 else acc))
    return out

UPRE = 4

def xdma(a, c):
    for j in range(4):
        a("s_add_u32 m0, s23, %d" % ((c % 3) * 4096 + j * 1024))
        a("s_mov_b32 s28, %d" % (j * 10240 + c * 128))
        a("buffer_load_dwordx4 v%d, s[4:7], s28 offen lds" % (4 if j % 2 == 0 else XP2), tag=("xc", c))

def xreads(c):
    out = []
    for p in range(2):
        for P in range(2):
            out.append("ds_read_b128 %s, v%d offset:%d" % (ar(((2 * c + p) * 2 + P) * 4), XA0 + p, (c % 3) * 4096 + P * 2048))
    return out

def k1_gemm(a, br, phase, first_hook=None):
    if phase == 0:
        a("v_lshrrev_b32 v16, 1, v3")
        a("v_xor_b32 v16, v16, v2")
        a("v_lshlrev_b32 v17, 7, v3")
        a("v_add_u32 v17, s23, v17")
        a("v_lshl_add_u32 v14, v16, 4, v17")
        a("v_xor_b32 v15, 64, v14")
        a("v_xor_b32 v1, 64, v4")
        a.wait_vm(("xc", 0))
        for r in xreads(0):
            a(r)
        a.wait_vm(("dma", 0), "lgkmcnt(0)")
        a("s_barrier")
        xdma(a, 3)
        if first_hook: first_hook()
        lo, hi = 0, 20
    else:
        a.wait_vm(("dma", 10))
        a("s_barrier")
        for r in k1_reads(20, br) + k1_reads(21, br):
            a(r)
        for si in range(20, 40):
            n = STEPS[si][0]
            a("s_waitcnt lgkmcnt(%d)" % (10 if si < 39 else 0))
            rd = []
            if si + 2 < 40:
                n2 = STEPS[si + 2][0]
                if n2 != STEPS[si + 1][0]:
                    a.wait_vm(("dma", n2))
                    a("s_barrier")
                    if n2 == 12:
                        k1_dma(a, 14)
                rd = k1_reads(si + 2, br)
            interleave(a, k1_mfmas(si), rd)
        return
    for r in k1_reads(lo, br):
        a(r)
    pend_x = None
    for si in range(lo, hi):
        n, kind, ks, sub = STEPS[si]
        a("s_waitcnt lgkmcnt(0)")
        if pend_x is not None:
            if pend_x + 3 < 10:
                xdma(a, pend_x + 3)
            pend_x = None
        rd = []
        if si + 1 < hi:
            n2, kind2, ks2, _ = STEPS[si + 1]
            if kind2 == "P" and ks2 % 2 == 0:
                a.wait_vm(("xc", ks2 // 2))
                rd += xreads(ks2 // 2)
                pend_x = ks2 // 2
            if n2 != n:
                a.wait_vm(("dma", n2))
                a("s_barrier")
                if n2 <= 9:
                    k1_dma(a, n2 + 3)
                elif n2 == 11:
                    k1_dma(a, 14)
            rd += k1_reads(si + 1, br)
        interleave(a, k1_mfmas(si), rd)
        if kind == "P" and br == 1:
            a("s_cmp_eq_u32 s27, %d" % (ks & 3))
            a("s_cbranch_scc0 L_h%d" % ks)
            a.wait_vm(("xh", ks >> 2))
            fs = 16 + (si & 1) * 40
            for j in range(10):
                f = vr(fs + j * 4)
                x = ar(160 + (ks >> 2) * 4)
                acc = vr(HA + j * 4)
                if j < 5:
                    a("%s %s, %s, %s, %s" % (MF, acc, f, x, acc))
                else:
                    a("%s %s, %s, %s, %s" % (MF, acc, x, f, acc))
            a.label("L_h%d" % ks)
    if phase == 0:
        a("s_barrier")
        k1_dma(a, 13)
        a("v_and_b32 v1, 63, v0")

def load_wphi_frags(a):
    for tp in range(5):
        for c in range(3):
            f = WFA + (tp * 3 + c) * 4
            a("ds_read_b64_tr_b16 %s, v14 offset:%d" % (ar(f, 2), (8 * c) * 40 + 8 * tp))
            if c < 2:
                a("ds_read_b64_tr_b16 %s, v14 offset:%d" % (ar(f + 2, 2), (8 * c + 4) * 40 + 8 * tp))
            else:
                a("v_accvgpr_write_b32 a%d, 0" % (f + 2))
                a("v_accvgpr_write_b32 a%d, 0" % (f + 3))

def phi_stage(a, acc, out, T):
    kp = T; pk = T + 12; em = T + 32; tmp = T + 52
    for t in range(5):
        a("v_cvt_pk_bf16_f32 v%d, v%d, v%d" % (kp + 2 * t, acc + 4 * t, acc + 4 * t + 1))
        a("v_cvt_pk_bf16_f32 v%d, v%d, v%d" % (kp + 2 * t + 1, acc + 4 * t + 2, acc + 4 * t + 3))
    a("v_mov_b32 v%d, 0" % (kp + 10))
    a("v_mov_b32 v%d, 0" % (kp + 11))
    for c in range(3):
        for tp in range(5):
            d = vr(pk + 4 * tp)
            a("%s %s, %s, %s, %s" % (MF, d, ar(WFA + (tp * 3 + c) * 4), vr(kp + 4 * c), "0" if c == 0 else d))
    for m in range(10):
        a("v_cvt_pk_bf16_f32 v%d, v%d, v%d" % (kp + m, pk + 2 * m, pk + 2 * m + 1))
    for m in range(10):
        a("v_lshlrev_b32 v%d, 16, v%d" % (pk + 2 * m, kp + m))
        a("v_and_b32 v%d, 0xffff0000, v%d" % (pk + 2 * m + 1, kp + m))
    mx = tmp; mn = tmp + 1; s1 = tmp + 2; s2 = tmp + 3
    a("v_max3_f32 v%d, v%d, v%d, v%d" % (mx, pk, pk + 1, pk + 2))
    a("v_min3_f32 v%d, v%d, v%d, v%d" % (mn, pk, pk + 1, pk + 2))
    for m in range(3, 19, 2):
        a("v_max3_f32 v%d, v%d, v%d, v%d" % (mx, mx, pk + m, pk + m + 1))
        a("v_min3_f32 v%d, v%d, v%d, v%d" % (mn, mn, pk + m, pk + m + 1))
    a("v_max_f32 v%d, v%d, v%d" % (mx, mx, pk + 19))
    a("v_min_f32 v%d, v%d, v%d" % (mn, mn, pk + 19))
    a("v_mul_f32 v%d, s31, v%d" % (mx, mx))
    a("v_mul_f32 v%d, s31, v%d" % (mn, mn))
    for m in range(20):
        a("v_fma_f32 v%d, -v%d, s31, v%d" % (em + m, pk + m, mn))
        a("v_fma_f32 v%d, v%d, s31, -v%d" % (pk + m, pk + m, mx))
    for m in range(20):
        a("v_exp_f32 v%d, v%d" % (pk + m, pk + m))
        a("v_exp_f32 v%d, v%d" % (em + m, em + m))
    a("v_add_f32 v%d, v%d, v%d" % (s1, pk, pk + 1))
    a("v_add_f32 v%d, v%d, v%d" % (s2, em, em + 1))
    for m in range(2, 20):
        a("v_add_f32 v%d, v%d, v%d" % (s1, s1, pk + m))
        a("v_add_f32 v%d, v%d, v%d" % (s2, s2, em + m))
    a("v_rcp_f32 v%d, v%d" % (s1, s1))
    a("v_rcp_f32 v%d, v%d" % (s2, s2))
    for m in range(20):
        a("v_mul_f32 v%d, v%d, v%d" % (pk + m, pk + m, s1))
        a("v_mul_f32 v%d, v%d, v%d" % (em + m, em + m, s2))
    for m in range(10):
        a("v_cvt_pk_bf16_f32 v%d, v%d, v%d" % (out + m, pk + 2 * m, pk + 2 * m + 1))
        a("v_cvt_pk_bf16_f32 v%d, v%d, v%d" % (out + 10 + m, em + 2 * m, em + 2 * m + 1))

def store_frag(a, op, P):
    a("buffer_store_dwordx4 %s, v15, s[12:15], s22 offen offset:%d sc0 sc1" % (vr(op), 0), tag="st")
    a("buffer_store_dwordx4 %s, v15, s[12:15], s22 offen offset:%d sc0 sc1" % (vr(op + 4), 1024), tag="st")
    a("buffer_store_dwordx2 %s, v15, s[12:15], s23 offen sc0 sc1" % (vr(op + 8, 2)), tag="st")
    if P == 0:
        a("s_add_u32 s22, s22, 20480")
        a("s_add_u32 s23, s23, 20480")

def frag_store_setup(a, wsoff):
    a("s_lshl_b32 s22, s20, 3")
    a("s_lshl_b32 s28, s27, 1")
    a("s_add_u32 s22, s22, s28")
    a("s_mul_i32 s22, s22, 20480")
    a("s_add_u32 s22, s22, 0x%x" % wsoff)
    a("s_lshr_b32 s28, s21, 1")
    a("s_mul_i32 s28, s28, 5120")
    a("s_add_u32 s22, s22, s28")
    a("s_add_u32 s23, s22, 2048")
    a("s_and_b32 s28, s21, 1")
    a("s_mul_i32 s29, s28, 3072")
    a("s_add_u32 s22, s22, s29")
    a("s_lshl_b32 s28, s28, 3")
    a("s_add_u32 s23, s23, s28")
    a("v_lshlrev_b32 v15, 4, v1")

def gen_k1(a):
    a.raw(".globl %s\n.p2align 8\n.type %s,@function\n%s:" % (KN, KN, KN))
    a("s_cmp_ge_u32 s2, 256")
    a("s_cbranch_scc1 L_k1_end")
    if STAMPS: a("s_memrealtime s[94:95]")
    load_kernargs(a)
    a("s_and_b32 s28, s2, 7")
    a("s_lshr_b32 s29, s2, 3")
    a("s_lshr_b32 s20, s28, 2")
    a("s_lshl_b32 s20, s20, 3")
    a("s_lshr_b32 s30, s29, 2")
    a("s_add_u32 s20, s20, s30")
    a("s_and_b32 s21, s28, 3")
    a("s_lshl_b32 s21, s21, 2")
    a("s_and_b32 s30, s29, 3")
    a("s_add_u32 s21, s21, s30")
    a("s_lshr_b32 s3, s21, 3")
    a("s_and_b32 s21, s21, 7")
    a("v_and_b32 v1, 63, v0")
    a("v_lshrrev_b32 v2, 6, v0")
    a("v_readfirstlane_b32 s27, v2")
    a("v_lshrrev_b32 v2, 4, v1")
    a("v_and_b32 v3, 15, v1")
    a("s_lshl_b32 s28, s20, 7")
    a("s_lshl_b32 s29, s27, 5")
    a("s_add_u32 s28, s28, s29")
    a("v_lshrrev_b32 v14, 3, v1")
    a("v_add_u32 v4, s28, v14")
    a("v_mul_u32_u24 v4, 1280, v4")
    a("v_lshrrev_b32 v14, 1, v14")
    a("v_and_b32 v15, 7, v1")
    a("v_xor_b32 v14, v14, v15")
    a("v_lshl_add_u32 v4, v14, 4, v4")
    a("s_lshr_b32 s28, s27, 1")
    a("s_mul_i32 s24, s28, 122880")
    a("s_and_b32 s28, s27, 1")
    a("s_add_u32 s28, s28, 1")
    a("s_mul_i32 s28, s28, 1280")
    a("s_add_u32 s24, s24, s28")
    a("s_mul_i32 s28, s21, 160")
    a("s_add_u32 s24, s24, s28")
    a("s_mul_i32 s25, s27, 122880")
    a("s_add_u32 s25, s25, s28")
    a("s_mul_i32 s26, s27, 5120")
    for i5 in range(5):
        dma_row_decode(a, 14, 15, i5, 16)
        a("v_lshrrev_b32 v16, 4, v14")
        a("v_bfe_u32 v17, v14, 2, 2")
        a("v_and_b32 v18, 3, v14")
        a("v_lshlrev_b32 v17, 3, v17")
        a("v_lshl_add_u32 v17, v16, 2, v17")
        a("v_add_u32 v17, v17, v18")
        a("v_mul_u32_u24 v17, 3840, v17")
        a("v_lshl_add_u32 v%d, v15, 4, v17" % (5 + i5))
    a("s_mul_i32 s23, s27, 12288")
    a("s_add_u32 s23, s23, %d" % XR)
    a("v_xor_b32 v240, 64, v4")
    a("s_waitcnt lgkmcnt(0)")
    srd(a, 4, 64, 65, 2621440)
    a("s_cmp_eq_u32 s3, 0")
    a("s_cselect_b32 s8, s66, s74")
    a("s_cselect_b32 s9, s67, s75")
    a("s_mov_b32 s10, 2457600")
    a("s_mov_b32 s11, 0x00020000")
    srd(a, 12, 84, 85, 0x10000000)
    srd(a, 16, 82, 83, 256)
    a("s_or_b32 s28, s3, s27")
    a("s_cmp_lg_u32 s28, 0")
    a("s_cbranch_scc1 L_nz")
    a("v_mov_b32 v16, 0"); a("v_mov_b32 v17, 0"); a("v_mov_b32 v18, 0"); a("v_mov_b32 v19, 0")
    a("v_lshlrev_b32 v15, 4, v1")
    a("s_lshl_b32 s28, s21, 14")
    a("s_lshl_b32 s29, s20, 10")
    a("s_add_u32 s28, s28, s29")
    a("buffer_store_dwordx4 v[16:19], v15, s[12:15], s28 offen sc0 sc1")
    a.vm.pop()
    a.label("L_nz")
    a("v_mov_b32 v241, v1")
    a("v_mov_b32 v1, v240")
    xdma(a, 0)
    k1_dma(a, 0)
    xdma(a, 1)
    k1_dma(a, 1)
    xdma(a, 2)
    k1_dma(a, 2)
    k1_dma(a, 3)
    a("v_mov_b32 v1, v241")
    stamp(a, 0)
    a("v_lshrrev_b32 v16, 2, v3")
    a("v_and_b32 v17, 3, v3")
    a("v_lshl_add_u32 v16, v2, 2, v16")
    a("v_mul_u32_u24 v16, 160, v16")
    a("v_lshl_add_u32 v10, v17, 3, v16")
    a("v_add_u32 v11, 61440, v10")
    a("v_mul_u32_u24 v17, 40, v17")
    a("v_add_u32 v12, v16, v17")
    a("v_add_u32 v13, 61440, v12")
    a("s_mov_b32 s31, 0x%x" % L2E)
    a("s_cmp_eq_u32 s3, 0")
    a("s_cbranch_scc0 L_k1_B")
    vm_snapshot = list(a.vm)

    srd(a, 32, 68, 69, 25600)
    a("s_mul_i32 s28, s21, 3200")
    a("v_lshlrev_b32 v15, 4, v0")
    a("buffer_load_dwordx4 v[16:19], v15, s[32:35], s28 offen", tag="wphi")
    a("v_mov_b32 v20, 0"); a("v_mov_b32 v21, 0"); a("v_mov_b32 v22, 0"); a("v_mov_b32 v23, 0")
    a("v_add_u32 v24, %d, v15" % ZR)
    a("v_cmp_gt_u32 vcc, 128, v0")
    a("s_and_saveexec_b64 s[28:29], vcc")
    a("ds_write_b128 v24, v[20:23]")
    a("s_mov_b64 exec, s[28:29]")
    a.wait_vm("wphi")
    a("v_add_u32 v24, %d, v15" % WPHI)
    a("v_cmp_gt_u32 vcc, 200, v0")
    a("s_and_saveexec_b64 s[28:29], vcc")
    a("ds_write_b128 v24, v[16:19]")
    a("s_mov_b64 exec, s[28:29]")
    stamp(a, 1)
    def hookZ():
        a("v_mov_b32 v16, v14")
        signal(a, "L_sz", 0)
        a("v_mov_b32 v14, v16")
    k1_gemm(a, 0, 0, hookZ)
    stamp(a, 2)
    a("s_lshl_b32 s30, s21, 2")
    a("buffer_load_dword v250, off, s[16:19], s30 sc1", tag="zf")
    a("v_lshrrev_b32 v16, 2, v3")
    a("v_and_b32 v17, 3, v3")
    a("v_mul_u32_u24 v18, 800, v2")
    a("v_mul_u32_u24 v16, 40, v16")
    a("v_add_u32 v18, v18, v16")
    a("v_add_u32 v18, %d, v18" % WPHI)
    a("v_mov_b32 v19, %d" % ZR)
    a("v_cmp_eq_u32 vcc, v17, v2")
    a("v_cndmask_b32 v14, v19, v18, vcc")
    load_wphi_frags(a)
    a("v_lshlrev_b32 v15, 4, v1")
    a("s_mul_i32 s28, s27, 5120")
    a("s_add_u32 s28, s28, %d" % VFR)
    a("v_add_u32 v15, s28, v15")
    for t in range(5):
        for P in range(2):
            b = VA + (P * 5 + t) * 4
            a("v_cvt_pk_bf16_f32 v%d, v%d, v%d" % (16 + t * 4 + 2 * P, b, b + 1))
            a("v_cvt_pk_bf16_f32 v%d, v%d, v%d" % (16 + t * 4 + 2 * P + 1, b + 2, b + 3))
        a("ds_write_b128 v15, %s offset:%d" % (vr(16 + t * 4), t * 1024))
    a("s_waitcnt lgkmcnt(0)")
    a("s_lshl_b32 s28, s27, 5")
    a("v_add_u32 v15, s28, v3")
    a("v_mul_u32_u24 v15, %d, v15" % PHI_STRIDE)
    a("v_mul_u32_u24 v16, 80, v2")
    a("v_add_u32 v15, v15, v16")
    a("v_add_u32 v15, %d, v15" % PHI)
    for P in range(2):
        phi_stage(a, KA + P * 20, 136 + P * 20, 16)
        for c in range(5):
            a("ds_write_b128 v15, %s offset:%d" % (vr(136 + P * 20 + 4 * c), P * 16 * PHI_STRIDE + 16 * c))
    a("s_waitcnt lgkmcnt(0)")
    a("s_barrier")
    stamp(a, 3)
    a("v_lshrrev_b32 v16, 2, v3")
    a("v_and_b32 v17, 3, v3")
    a("v_lshl_add_u32 v16, v2, 2, v16")
    a("v_mul_u32_u24 v16, %d, v16" % PHI_STRIDE)
    a("v_lshl_add_u32 v16, v17, 3, v16")
    a("s_mul_i32 s28, s27, 80")
    a("s_add_u32 s28, s28, %d" % PHI)
    a("v_add_u32 v16, s28, v16")
    a("v_lshlrev_b32 v17, 4, v1")
    a("s_lshl_b32 s28, s27, 10")
    a("s_add_u32 s28, s28, %d" % VFR)
    a("v_add_u32 v17, s28, v17")
    for q in range(4):
        a("v_mov_b32 v%d, 0x3f803f80" % (20 + q))
    KVA = 96
    for s4 in range(4):
        pf = 24 + (s4 & 1) * 20
        for ft in range(3):
            for h in range(2):
                a("ds_read_b64_tr_b16 %s, v16 offset:%d" % (vr(pf + ft * 4 + 2 * h, 2), (s4 * 32 + h * 16) * PHI_STRIDE + 32 * ft))
        for tt in range(2):
            a("ds_read_b128 %s, v17 offset:%d" % (vr(pf + 12 + tt * 4), s4 * 5120 + tt * 1024))
        a("s_waitcnt lgkmcnt(0)")
        for ft in range(3):
            for tt in range(3):
                d = vr(KVA + (ft * 3 + tt) * 4)
                A_ = vr(pf + 12 + tt * 4) if tt < 2 else vr(20)
                a("%s %s, %s, %s, %s" % (MF, d, A_, vr(pf + ft * 4), "0" if s4 == 0 else d))
    stamp(a, 4)
    a.wait_vm("zf")
    a("v_readfirstlane_b32 s28, v250")
    a("s_cmp_ge_u32 s28, 16")
    a("s_cbranch_scc1 L_pz_ok")
    keep = list(a.vm)
    poll(a, "L_pz", 0, 16)
    a.vm = keep
    a.label("L_pz_ok")
    a("v_mul_u32_u24 v15, 640, v2")
    a("v_lshl_add_u32 v15, v3, 2, v15")
    a("s_lshl_b32 s28, s21, 14")
    a("s_mul_i32 s29, s27, 2720")
    a("s_add_u32 s28, s28, s29")
    a("v_cmp_ge_u32 s[32:33], v2, s27")
    a("v_cmp_le_u32 s[34:35], v2, s27")
    a("v_cmp_gt_u32 s[36:37], 8, v3")
    a("s_and_b64 s[38:39], s[32:33], s[36:37]")
    a("s_and_b64 s[40:41], s[34:35], s[36:37]")
    for tt in range(2):
        for ft in range(3):
            msk = (32 if tt == 0 else 34) if ft < 2 else (38 if tt == 0 else 40)
            a("s_mov_b64 exec, s[%d:%d]" % (msk, msk + 1))
            for r in range(4):
                a("buffer_atomic_add_f32 v%d, v15, s[12:15], s28 offen offset:%d" %
                  (KVA + (ft * 3 + tt) * 4 + r, tt * 2560 + r * 160 + ft * 64), tag="atom")
    a("s_lshl_b32 s28, s21, 14")
    a("s_mul_i32 s29, s27, 3360")
    a("s_add_u32 s28, s28, s29")
    for ft in range(3):
        a("s_mov_b64 exec, 0x%x" % (0xffff if ft < 2 else 0xff))
        a("buffer_atomic_add_f32 v%d, v15, s[12:15], s28 offen offset:%d" % (KVA + (ft * 3 + 2) * 4, 3200 + ft * 64), tag="atom")
    a("s_mov_b64 exec, -1")
    stamp(a, 5)
    PQ = 136
    k1_gemm(a, 0, 1)
    a.wait_vm("atom")
    a("s_barrier")
    signal(a, "L_sc", 32)
    stamp(a, 6)
    phi_stage(a, QA, PQ, 16)
    phi_stage(a, QA + 20, PQ + 20, 16)
    stamp(a, 7)
    a("s_lshl_b32 s30, s21, 2")
    poll1(a, "L_pc", 32, 16)
    stamp(a, 8)
    a("v_lshlrev_b32 v15, 4, v0")
    a("s_lshl_b32 s28, s21, 14")
    for q in range(4):
        a("buffer_load_dwordx4 %s, v15, s[12:15], s28 offen sc1" % vr(16 + 4 * q), tag="kv")
        a("s_add_u32 s28, s28, 4096")
    a("v_lshlrev_b32 v15, 3, v0")
    a("v_add_u32 v15, %d, v15" % KVB)
    a.wait_vm("kv")
    for q in range(4):
        a("v_cvt_pk_bf16_f32 v%d, v%d, v%d" % (32 + 2 * q, 16 + 4 * q, 17 + 4 * q))
        a("v_cvt_pk_bf16_f32 v%d, v%d, v%d" % (33 + 2 * q, 18 + 4 * q, 19 + 4 * q))
        a("ds_write_b64 v15, %s offset:%d" % (vr(32 + 2 * q, 2), q * 2048))
    a("v_lshrrev_b32 v16, 2, v3")
    a("v_and_b32 v17, 3, v3")
    a("v_mul_u32_u24 v18, 21, v2")
    a("v_add_u32 v19, v18, v17")
    a("v_mul_u32_u24 v19, 80, v19")
    a("v_add_u32 v19, %d, v19" % KVB)
    a("v_mul_u32_u24 v18, 80, v18")
    a("v_add_u32 v18, %d, v18" % (KVB + 1600))
    a("v_mov_b32 v20, %d" % ZR)
    a("v_cmp_eq_u32 vcc, v16, v2")
    a("v_cndmask_b32 v16, v20, v19, vcc")
    a("v_cndmask_b32 v17, v20, v18, vcc")
    a("s_waitcnt lgkmcnt(0)")
    a("s_barrier")
    NUM = 40
    for t in range(6):
        fb = 216 + (t & 1) * 20
        for c in range(5):
            if t < 5:
                a("ds_read_b128 %s, v16 offset:%d" % (vr(fb + 4 * c), 320 * t + 16 * c))
            else:
                a("ds_read_b128 %s, v17 offset:%d" % (vr(fb + 4 * c), 16 * c))
        a("s_waitcnt lgkmcnt(0)")
        for c in range(5):
            for P in range(2):
                d = vr(NUM + (P * 6 + t) * 4)
                a("%s %s, %s, %s, %s" % (MF, d, vr(fb + 4 * c), vr(PQ + P * 20 + 4 * c), "0" if c == 0 else d))
    frag_store_setup(a, WS_OA)
    for P in range(2):
        nb = NUM + P * 24
        dn = nb + 20
        a("v_cvt_pk_bf16_f32 v%d, v%d, v%d" % (dn, dn, dn))
        a("v_lshlrev_b32 v%d, 16, v%d" % (dn, dn))
        a("v_add_f32 v%d, 0x358637bd, v%d" % (dn, dn))
        a("v_cvt_pk_bf16_f32 v%d, v%d, v%d" % (dn, dn, dn))
        a("v_lshlrev_b32 v%d, 16, v%d" % (dn, dn))
        a("v_rcp_f32 v%d, v%d" % (dn, dn))
        op = 100 + P * 12
        for m in range(10):
            a("v_cvt_pk_bf16_f32 v%d, v%d, v%d" % (op + m, nb + 2 * m, nb + 2 * m + 1))
        for m in range(10):
            a("v_lshlrev_b32 v%d, 16, v%d" % (nb + 2 * m, op + m))
            a("v_and_b32 v%d, 0xffff0000, v%d" % (nb + 2 * m + 1, op + m))
        for m in range(20):
            a("v_mul_f32 v%d, v%d, v%d" % (nb + m, nb + m, dn))
        for m in range(10):
            a("v_cvt_pk_bf16_f32 v%d, v%d, v%d" % (op + m, nb + 2 * m, nb + 2 * m + 1))
        store_frag(a, op, P)
    stamp(a, 9)
    a("s_branch L_p2")

    a.label("L_k1_B")
    a.vm = list(vm_snapshot)
    a("s_lshl_b32 s28, s20, 7")
    a("s_sub_u32 s28, s28, 16")
    a("v_add_u32 v14, s28, v3")
    a("v_mul_i32_i24 v14, 1280, v14")
    a("v_lshl_add_u32 v14, v2, 4, v14")
    a("s_lshl_b32 s28, s27, 6")
    for q in range(5):
        a("buffer_load_dwordx4 %s, v14, s[4:7], s28 offen offset:%d" % (ar(160 + 4 * q), q * 256), tag=("xh", q))
    for q in range(40):
        a("v_mov_b32 v%d, 0" % (HA + q))
    srd(a, 32, 78, 79, 1280)
    a("v_lshrrev_b32 v14, 4, v0")
    a("s_lshl_b32 s28, s20, 7")
    a("s_lshl_b32 s29, s21, 4")
    a("s_add_u32 s28, s28, s29")
    a("v_add_u32 v14, s28, v14")
    a("v_mul_u32_u24 v15, 1280, v14")
    a("v_lshl_add_u32 v15, v3, 4, v15")
    a("v_lshlrev_b32 v16, 4, v3")
    for c in range(5):
        a("buffer_load_dwordx4 %s, v15, s[4:7], 0 offen offset:%d" % (vr(20 + 4 * c), 256 * c), tag="gx")
        a("buffer_load_dwordx4 %s, v16, s[32:35], 0 offen offset:%d" % (vr(40 + 4 * c), 256 * c), tag="gx")
    a.wait_vm("gx")
    a("v_mov_b32 v60, 0")
    a("v_mov_b32 v61, 0")
    for m in range(20):
        a("v_lshlrev_b32 v62, 16, v%d" % (20 + m))
        a("v_and_b32 v63, 0xffff0000, v%d" % (20 + m))
        a("v_lshlrev_b32 v64, 16, v%d" % (40 + m))
        a("v_and_b32 v65, 0xffff0000, v%d" % (40 + m))
        a("v_mul_f32 v62, v62, v64")
        a("v_mul_f32 v63, v63, v65")
        a("v_cvt_pk_bf16_f32 v62, v62, v63")
        a("v_lshlrev_b32 v63, 16, v62")
        a("v_and_b32 v62, 0xffff0000, v62")
        a("v_add_f32 v60, v60, v63")
        a("v_add_f32 v61, v61, v62")
    a("v_add_f32 v60, v60, v61")
    for sh in (8, 4, 2, 1):
        a("v_add_f32_dpp v60, v60, v60 row_ror:%d row_mask:0xf bank_mask:0xf" % sh)
    a("v_cvt_pk_bf16_f32 v60, v60, v60")
    a("v_lshlrev_b32 v60, 16, v60")
    a("v_mul_f32 v60, s31, v60")
    a("v_exp_f32 v60, -v60")
    a("v_add_f32 v60, 1.0, v60")
    a("v_rcp_f32 v60, v60")
    a("v_cvt_pk_bf16_f32 v60, v60, v60")
    a("v_lshlrev_b32 v60, 16, v60")
    a("v_lshlrev_b32 v14, 2, v14")
    a("v_cmp_eq_u32 vcc, 0, v3")
    a("s_and_saveexec_b64 s[28:29], vcc")
    a("s_mov_b32 s36, 0x%x" % WS_G)
    a("buffer_store_dword v60, v14, s[12:15], s36 offen sc0 sc1", tag="gst")
    a("s_mov_b64 exec, s[28:29]")
    stamp(a, 10)
    a("v_lshlrev_b32 v14, 2, v2")
    a("v_sub_u32 v14, v3, v14")
    for r in range(4):
        a("v_subrev_u32 v15, %d, v14" % r)
        a("v_and_b32 v16, 1, v15")
        a("v_cmp_eq_u32 vcc, 0, v16")
        a("v_cmp_le_i32 s[28:29], 0, v15")
        a("s_and_b64 s[%d:%d], vcc, s[28:29]" % (32 + 2 * r, 33 + 2 * r))
        a("v_cmp_ge_i32 s[28:29], -2, v15")
        a("s_and_b64 s[%d:%d], vcc, s[28:29]" % (40 + 2 * r, 41 + 2 * r))
    a("s_or_b32 s28, s20, s27")
    a("s_cmp_eq_u32 s28, 0")
    for r in range(4):
        a("s_cselect_b64 s[%d:%d], 0, s[%d:%d]" % (48 + 2 * r, 49 + 2 * r, 40 + 2 * r, 41 + 2 * r))
    a("s_mov_b32 s56, 0xffff0000"); a("s_mov_b32 s57, -1")
    a("s_mov_b32 s58, 0"); a("s_mov_b32 s59, -1")
    a("s_mov_b32 s60, 0"); a("s_mov_b32 s61, 0xffff0000")
    stamp(a, 1)
    k1_gemm(a, 1, 0)
    stamp(a, 2)
    KP = 176; VP = 136; QP = 76
    for P in range(2):
        for t in range(5):
            b = KA + (P * 5 + t) * 4
            a("v_cvt_pk_bf16_f32 v%d, v%d, v%d" % (KP + (P + 1) * 10 + 2 * t, b, b + 1))
            a("v_cvt_pk_bf16_f32 v%d, v%d, v%d" % (KP + (P + 1) * 10 + 2 * t + 1, b + 2, b + 3))
            b = VA + (P * 5 + t) * 4
            a("v_cvt_pk_bf16_f32 v%d, v%d, v%d" % (16 + (P * 5 + t) * 2, b, b + 1))
            a("v_cvt_pk_bf16_f32 v%d, v%d, v%d" % (17 + (P * 5 + t) * 2, b + 2, b + 3))
    for P in range(2):
        for t in range(5):
            a("v_mov_b32 v%d, v%d" % (VP + t * 6 + 2 + 2 * P, 16 + (P * 5 + t) * 2))
            a("v_mov_b32 v%d, v%d" % (VP + t * 6 + 3 + 2 * P, 17 + (P * 5 + t) * 2))
    a("v_lshlrev_b32 v15, 3, v1")
    a("s_mul_i32 s28, s27, 5120")
    a("s_add_u32 s28, s28, %d" % EXC)
    a("v_add_u32 v15, s28, v15")
    for t in range(5):
        a("ds_write_b64 v15, %s offset:%d" % (vr(KP + 20 + 2 * t, 2), t * 512))
        a("ds_write_b64 v15, %s offset:%d" % (vr(VP + t * 6 + 4, 2), 2560 + t * 512))
    a("v_lshlrev_b32 v14, 4, v1")
    a("v_add_u32 v14, %d, v14" % HALO)
    a("s_cmp_eq_u32 s27, 0")
    a("s_cbranch_scc1 L_b_w0")
    a("s_mul_i32 s28, s27, 10240")
    a("s_sub_u32 s28, s28, 10240")
    a("v_add_u32 v96, s28, v14")
    for j in range(10):
        a("ds_write_b128 v96, %s offset:%d" % (vr(HA + 4 * j), j * 1024))
    a.label("L_b_w0")
    a("s_waitcnt lgkmcnt(0)")
    a("s_barrier")
    a("s_cmp_eq_u32 s27, 0")
    a("s_cbranch_scc0 L_b_nw0")
    for ww in range(3):
        for j in range(10):
            a("ds_read_b128 %s, v14 offset:%d" % (vr(96 + 4 * j), ww * 10240 + j * 1024))
        a("s_waitcnt lgkmcnt(0)")
        for q in range(40):
            a("v_add_f32 v%d, v%d, v%d" % (HA + q, HA + q, 96 + q))
    for t in range(5):
        b = HA + t * 4
        a("v_cvt_pk_bf16_f32 v%d, v%d, v%d" % (KP + 2 * t, b, b + 1))
        a("v_cvt_pk_bf16_f32 v%d, v%d, v%d" % (KP + 2 * t + 1, b + 2, b + 3))
        b = HA + 20 + t * 4
        a("v_cvt_pk_bf16_f32 v%d, v%d, v%d" % (VP + t * 6, b, b + 1))
        a("v_cvt_pk_bf16_f32 v%d, v%d, v%d" % (VP + t * 6 + 1, b + 2, b + 3))
    a("s_branch L_b_j")
    a.label("L_b_nw0")
    a("v_subrev_u32 v15, 5120, v15")
    for t in range(5):
        a("ds_read_b64 %s, v15 offset:%d" % (vr(KP + 2 * t, 2), t * 512))
        a("ds_read_b64 %s, v15 offset:%d" % (vr(VP + t * 6, 2), 2560 + t * 512))
    a("s_waitcnt lgkmcnt(0)")
    a.label("L_b_j")
    stamp(a, 5)
    k1_gemm(a, 1, 1)
    for P in range(2):
        for t in range(5):
            b = QA + (P * 5 + t) * 4
            a("v_cvt_pk_bf16_f32 v%d, v%d, v%d" % (QP + P * 10 + 2 * t, b, b + 1))
            a("v_cvt_pk_bf16_f32 v%d, v%d, v%d" % (QP + P * 10 + 2 * t + 1, b + 2, b + 3))
    stamp(a, 6)
    a("v_mov_b32 v14, 0xf149f2ca")
    a("s_mov_b32 s30, 0x%x" % SCALE)
    frag_store_setup(a, WS_OB)
    H = range(4)
    def QM(h): return 96 + h * 4
    def TM(h): return 112 + h * 6
    def SBr(h): return 206 + h * 8
    OACC = 16
    for P in range(2):
        for h in H:
            for q in range(2):
                src = QP + P * 10 + 2 * h + q
                if h == 0:
                    a("v_mov_b32 v%d, v%d" % (QM(h) + q, src))
                else:
                    a("v_cndmask_b32 v%d, 0, v%d, s[%d:%d]" % (QM(h) + q, src, 54 + 2 * h, 55 + 2 * h))
                src = QP + P * 10 + 2 * h + 2 + q
                if h == 3:
                    a("v_mov_b32 v%d, v%d" % (QM(h) + 2 + q, src))
                else:
                    a("v_cndmask_b32 v%d, v%d, 0, s[%d:%d]" % (QM(h) + 2 + q, src, 56 + 2 * h, 57 + 2 * h))
        for h in H:
            a("%s %s, %s, %s, 0" % (MF, vr(SBr(h)), vr(KP + P * 10 + 2 * h), vr(QM(h))))
            a("%s %s, %s, %s, 0" % (MF, vr(SBr(h) + 4), vr(KP + (P + 1) * 10 + 2 * h), vr(QM(h))))
        for rnd in range(2):
            for h in H:
                for m in range(4):
                    a("v_cvt_pk_bf16_f32 v%d, v%d, v%d" % (TM(h) + m, SBr(h) + 2 * m, SBr(h) + 2 * m + 1))
            for h in H:
                for m in range(4):
                    a("v_lshlrev_b32 v%d, 16, v%d" % (SBr(h) + 2 * m, TM(h) + m))
                    a("v_and_b32 v%d, 0xffff0000, v%d" % (SBr(h) + 2 * m + 1, TM(h) + m))
            if rnd == 0:
                for h in H:
                    for m in range(8):
                        a("v_mul_f32 v%d, s30, v%d" % (SBr(h) + m, SBr(h) + m))
        for h in H:
            for r in range(4):
                mp = (48 if P == 0 else 40) + 2 * r
                a("v_cndmask_b32 v%d, v14, v%d, s[%d:%d]" % (SBr(h) + r, SBr(h) + r, mp, mp + 1))
                a("v_cndmask_b32 v%d, v14, v%d, s[%d:%d]" % (SBr(h) + 4 + r, SBr(h) + 4 + r, 32 + 2 * r, 33 + 2 * r))
        for h in H:
            s = SBr(h); mx = TM(h) + 4
            a("v_max3_f32 v%d, v%d, v%d, v%d" % (mx, s, s + 1, s + 2))
            a("v_max3_f32 v%d, v%d, v%d, v%d" % (mx, mx, s + 3, s + 4))
            a("v_max3_f32 v%d, v%d, v%d, v%d" % (mx, mx, s + 5, s + 6))
            a("v_max_f32 v%d, v%d, v%d" % (mx, mx, s + 7))
        def xred(op):
            for sw in ("v_permlane16_swap_b32", "v_permlane32_swap_b32"):
                for h in H:
                    a("v_mov_b32 v%d, v%d" % (TM(h) + 5, TM(h) + 4))
                for h in H:
                    a("%s v%d, v%d" % (sw, TM(h) + 4, TM(h) + 5))
                for h in H:
                    a("%s v%d, v%d, v%d" % (op, TM(h) + 4, TM(h) + 4, TM(h) + 5))
        xred("v_max_f32")
        for h in H:
            a("v_mul_f32 v%d, s31, v%d" % (TM(h) + 4, TM(h) + 4))
        for h in H:
            for m in range(8):
                a("v_fma_f32 v%d, v%d, s31, -v%d" % (SBr(h) + m, SBr(h) + m, TM(h) + 4))
        for h in H:
            for m in range(8):
                a("v_exp_f32 v%d, v%d" % (SBr(h) + m, SBr(h) + m))
        for h in H:
            s = SBr(h); sm = TM(h) + 4
            a("v_add_f32 v%d, v%d, v%d" % (sm, s, s + 1))
            for m in range(2, 8):
                a("v_add_f32 v%d, v%d, v%d" % (sm, sm, s + m))
        xred("v_add_f32")
        for h in H:
            a("v_rcp_f32 v%d, v%d" % (TM(h) + 4, TM(h) + 4))
        for h in H:
            for m in range(8):
                a("v_mul_f32 v%d, v%d, v%d" % (SBr(h) + m, SBr(h) + m, TM(h) + 4))
        for h in H:
            for m in range(4):
                a("v_cvt_pk_bf16_f32 v%d, v%d, v%d" % (TM(h) + m, SBr(h) + 2 * m, SBr(h) + 2 * m + 1))
        for h in H:
            for tt in range(2):
                t = h + tt
                a("%s %s, %s, %s, 0" % (MF, vr(OACC + (h * 2 + tt) * 4), vr(VP + t * 6 + 2 * P), vr(TM(h))))
        OP = 48 + P * 10
        for t in range(5):
            if t == 0:
                src = OACC + 0
            elif t == 4:
                src = OACC + (3 * 2 + 1) * 4
            else:
                src = OACC + (t * 2) * 4
                oth = OACC + ((t - 1) * 2 + 1) * 4
                for r in range(4):
                    a("v_cndmask_b32 v%d, v%d, v%d, s[%d:%d]" % (src + r, oth + r, src + r, 54 + 2 * t, 55 + 2 * t))
            a("v_cvt_pk_bf16_f32 v%d, v%d, v%d" % (OP + 2 * t, src, src + 1))
            a("v_cvt_pk_bf16_f32 v%d, v%d, v%d" % (OP + 2 * t + 1, src + 2, src + 3))
        store_frag(a, OP, P)
    stamp(a, 9)

NB2 = 8
U2PRE = 5
O2PRE = 8

def k2_dma_unit(a, u):
    buf = u % NB2
    def kk(ks):
        q5, m = divmod(ks, 5)
        if m == 2:
            return 160 * q5, 2
        hgp = 2 * q5 + (1 if m >= 3 else 0)
        c = m if m < 2 else m - 3
        return 80 * hgp, c
    k00, k10 = kk(2 * u); k01, k11 = kk(2 * u + 1)
    a("s_cmp_eq_u32 s24, 0")
    a("s_cselect_b32 s28, %d, %d" % (k00 // 16, k01 // 16))
    a("s_cselect_b32 s29, %d, %d" % (k10, k11))
    a("s_lshl_b32 s28, s28, 4")
    a("s_mul_i32 s29, s29, s25")
    a("s_add_u32 s28, s28, s29")
    a("s_mul_i32 s28, s28, 1280")
    a("s_add_u32 s28, s28, s23")
    pat = 5
    if u in (1, 6): pat = 10
    if u in (3, 8): pat = 15
    for i5 in range(5):
        a("s_add_u32 m0, s26, %d" % (buf * 20480 + i5 * 1024))
        a("buffer_load_dwordx4 v%d, s[8:11], s28 offen lds" % (pat + i5), tag=("dma", u))

def k2_reads(ks):
    u = ks >> 1; par = ks & 1; buf = u % NB2
    st = ks & 1
    out = []
    img = buf * 20480 + par * 5120
    base = 20 + img // 61440
    img -= (img // 61440) * 61440
    for t in range(5):
        f = 152 + (ks % 3) * 20 + t * 4
        for h in range(2):
            out.append("ds_read_b64_tr_b16 %s, v%d offset:%d" % (vr(f + 2 * h, 2), base, img + h * 2560 + 32 * t))
    return out

def gen_k2(a):
    a.label("L_p2")
    a.vm = ["st"] * 8
    a("s_lshl_b32 s37, s20, 2")
    a("s_and_b32 s28, s2, 7")
    a("s_lshr_b32 s29, s2, 3")
    a("s_lshr_b32 s20, s28, 1")
    a("s_lshl_b32 s20, s20, 3")
    a("s_lshr_b32 s30, s29, 2")
    a("s_add_u32 s20, s20, s30")
    a("s_and_b32 s21, s28, 1")
    a("s_lshl_b32 s21, s21, 2")
    a("s_and_b32 s30, s29, 3")
    a("s_add_u32 s21, s21, s30")
    a("v_and_b32 v1, 63, v0")
    a("v_lshrrev_b32 v2, 6, v0")
    a("v_readfirstlane_b32 s27, v2")
    a("v_lshrrev_b32 v2, 4, v1")
    a("v_and_b32 v3, 15, v1")
    a("s_lshr_b32 s3, s27, 1")
    a("s_and_b32 s24, s27, 1")
    a("s_mul_i32 s23, s21, 160")
    a("s_mul_i32 s26, s27, 5120")
    a("v_lshlrev_b32 v4, 4, v1")
    for i5 in range(5):
        dma_row_decode(a, 24, 25, i5, 26)
        a("v_lshrrev_b32 v26, 4, v24")
        a("v_bfe_u32 v27, v24, 2, 2")
        a("v_and_b32 v28, 3, v24")
        a("v_mul_u32_u24 v29, 20, v27")
        a("v_lshlrev_b32 v30, 2, v27")
        a("s_cmp_eq_u32 s3, 0")
        a("s_cselect_b64 vcc, -1, 0")
        a("v_cndmask_b32 v29, v30, v29, vcc")
        a("v_add_u32 v29, v29, v28")
        a("v_lshlrev_b32 v30, 2, v26")
        a("v_lshlrev_b32 v31, 4, v26")
        a("v_cndmask_b32 v30, v31, v30, vcc")
        a("v_add_u32 v30, v30, v29")
        a("v_mul_u32_u24 v31, 80, v26")
        a("v_add_u32 v31, v31, v29")
        a("v_mul_u32_u24 v30, 1280, v30")
        a("v_mul_u32_u24 v31, 1280, v31")
        a("v_lshl_add_u32 v%d, v25, 4, v30" % (5 + i5))
        a("v_lshl_add_u32 v31, v25, 4, v31")
        a("s_cmp_eq_u32 s24, 0")
        a("s_cselect_b64 vcc, -1, 0")
        a("v_cndmask_b32 v%d, v%d, v31, vcc" % (10 + i5, 5 + i5))
        a("v_cndmask_b32 v%d, v31, v%d, vcc" % (15 + i5, 5 + i5))
    a.wait_vm_all()
    a("s_barrier")
    a("s_cmp_lg_u32 s27, 0")
    a("s_cbranch_scc1 L_p2_ns")
    a("v_mov_b32 v24, 1")
    a("s_mov_b64 exec, 1")
    a("buffer_atomic_add v24, off, s[16:19], s37 offset:64")
    a.vm.pop()
    a("s_mov_b64 exec, -1")
    a.label("L_p2_ns")
    a("s_cmp_eq_u32 s3, 0")
    a("s_cselect_b32 s8, s70, s76")
    a("s_cselect_b32 s9, s71, s77")
    a("s_mov_b32 s10, 819200")
    a("s_mov_b32 s11, 0x00020000")
    a("s_cselect_b32 s25, 8, 32")
    a("s_mov_b32 s28, 0x%x" % WS_OA)
    a("s_mov_b32 s29, 0x%x" % WS_OB)
    a("s_cselect_b32 s22, s28, s29")
    srd(a, 32, 80, 81, 2621440)
    a("s_lshl_b32 s28, s20, 2")
    a("s_lshl_b32 s29, s24, 1")
    a("s_add_u32 s28, s28, s29")
    a("s_mul_i32 s28, s28, 20480")
    a("s_add_u32 s22, s22, s28")
    a("s_add_u32 s30, s22, 20480")
    def oload(ks):
        off = ks * 1024
        a("s_add_u32 s28, s22, %d" % off)
        a("s_add_u32 s29, s30, %d" % off)
        a("buffer_load_dwordx4 %s, v4, s[12:15], s28 offen" % ar((ks * 2) * 4), tag=("x", ks))
        a("buffer_load_dwordx4 %s, v4, s[12:15], s29 offen" % ar((ks * 2 + 1) * 4), tag=("x", ks))
    oi = 0
    for u in range(U2PRE):
        k2_dma_unit(a, u)
    a("s_mov_b32 s36, s30")
    a("s_lshr_b32 s30, s20, 1")
    a("s_lshl_b32 s30, s30, 2")
    stamp(a, 11)
    poll1(a, "L_pr", 64, 16, 23, False)
    stamp(a, 12)
    a("s_mov_b32 s30, s36")
    while oi < O2PRE:
        oload(oi); oi += 1
    a("s_lshl_b32 s28, s20, 6")
    a("s_lshl_b32 s29, s24, 5")
    a("s_add_u32 s28, s28, s29")
    a("v_add_u32 v64, s28, v3")
    a("v_lshlrev_b32 v65, 2, v64")
    a("s_mov_b32 s29, 0x%x" % WS_G)
    a("buffer_load_dword v66, v65, s[12:15], s29 offen", tag="g")
    a("buffer_load_dword v67, v65, s[12:15], s29 offen offset:64", tag="g")
    stamp(a, 13)
    a("v_lshrrev_b32 v24, 2, v3")
    a("v_and_b32 v25, 3, v3")
    a("v_lshl_add_u32 v24, v2, 2, v24")
    a("v_mul_u32_u24 v24, 160, v24")
    a("v_lshl_add_u32 v24, v25, 3, v24")
    a("s_mul_i32 s28, s3, 10240")
    a("v_add_u32 v20, s28, v24")
    a("v_add_u32 v21, 61440, v20")
    a("v_add_u32 v22, 61440, v21")
    ACC = 72
    a.wait_vm(("dma", 0))
    a("s_barrier")
    for r in k2_reads(0) + k2_reads(1):
        a(r)
    for ks in range(20):
        a("s_waitcnt lgkmcnt(%d)" % (10 if ks < 19 else 0))
        a.wait_vm(("x", ks))
        nxt = ks + 2
        rd = []
        if nxt < 20:
            if nxt % 2 == 0:
                un = nxt // 2
                a.wait_vm(("dma", un))
                a("s_barrier")
                if un + U2PRE - 1 < 10:
                    k2_dma_unit(a, un + U2PRE - 1)
            rd = k2_reads(nxt)
        if oi < 20:
            oload(oi); oi += 1
        mf = []
        for t in range(5):
            for P in range(2):
                acc = vr(ACC + (P * 5 + t) * 4)
                mf.append("%s %s, %s, %s, %s" % (MF, acc, vr(152 + (ks % 3) * 20 + t * 4), ar((ks * 2 + P) * 4), "0" if ks == 0 else acc))
        interleave(a, mf, rd)
    stamp(a, 14)
    EX2 = 2 * 20480
    a("v_lshlrev_b32 v24, 4, v1")
    a("s_mul_i32 s28, s24, 10240")
    a("s_add_u32 s28, s28, %d" % EX2)
    a("v_add_u32 v24, s28, v24")
    a("s_cmp_eq_u32 s3, 0")
    a("s_cbranch_scc1 L_k2_a")
    for j in range(10):
        a("ds_write_b128 v24, %s offset:%d" % (vr(ACC + 4 * j), j * 1024))
    a("s_waitcnt lgkmcnt(0)")
    a("s_barrier")
    a("s_endpgm")
    a.label("L_k2_a")
    a("s_barrier")
    BB = 112
    for j in range(10):
        a("ds_read_b128 %s, v24 offset:%d" % (vr(BB + 4 * j), j * 1024))
    a.wait_vm("g", "lgkmcnt(0)")
    a("v_mul_u32_u24 v64, 1280, v64")
    a("v_lshl_add_u32 v64, v2, 3, v64")
    a("s_add_u32 s29, s23, 20480")
    for P in range(2):
        gq = 66 + P
        a("v_sub_f32 v68, 1.0, v%d" % gq)
        a("v_cvt_pk_bf16_f32 v68, v68, v68")
        a("v_lshlrev_b32 v68, 16, v68")
        for t in range(5):
            A0 = ACC + (P * 5 + t) * 4
            B0 = BB + (P * 5 + t) * 4
            for X in (A0, B0):
                a("v_cvt_pk_bf16_f32 v28, v%d, v%d" % (X, X + 1))
                a("v_cvt_pk_bf16_f32 v29, v%d, v%d" % (X + 2, X + 3))
                a("v_lshlrev_b32 v%d, 16, v28" % X)
                a("v_and_b32 v%d, 0xffff0000, v28" % (X + 1))
                a("v_lshlrev_b32 v%d, 16, v29" % (X + 2))
                a("v_and_b32 v%d, 0xffff0000, v29" % (X + 3))
                mul = gq if X == A0 else 68
                for r in range(4):
                    a("v_mul_f32 v%d, v%d, v%d" % (X + r, X + r, mul))
                a("v_cvt_pk_bf16_f32 v28, v%d, v%d" % (X, X + 1))
                a("v_cvt_pk_bf16_f32 v29, v%d, v%d" % (X + 2, X + 3))
                a("v_lshlrev_b32 v%d, 16, v28" % X)
                a("v_and_b32 v%d, 0xffff0000, v28" % (X + 1))
                a("v_lshlrev_b32 v%d, 16, v29" % (X + 2))
                a("v_and_b32 v%d, 0xffff0000, v29" % (X + 3))
            for r in range(4):
                a("v_add_f32 v%d, v%d, v%d" % (A0 + r, A0 + r, B0 + r))
            a("v_cvt_pk_bf16_f32 v%d, v%d, v%d" % (B0, A0, A0 + 1))
            a("v_cvt_pk_bf16_f32 v%d, v%d, v%d" % (B0 + 1, A0 + 2, A0 + 3))
            a("buffer_store_dwordx2 %s, v64, s[32:35], %s offen offset:%d" % (vr(B0, 2), "s23" if P == 0 else "s29", t * 32))
    stamp(a, 15)
    a.label("L_k1_end")
    a("s_endpgm")

HEADER = open("cdna_kernels/%s.s.ref" % NAME).read().split("; Override launch")[0]

def main(path):
    a = Asm()
    a.raw(HEADER.rstrip())
    a.raw("; @launch grid=(256,1,1) block=(256,1,1) lds=163840")
    a.raw('.amdgcn_target "amdgcn-amd-amdhsa--gfx950"\n.text')
    gen_k1(a)
    gen_k2(a)
    a.raw('.section .rodata,"a"')
    for k in (KN,):
        a.raw(""".p2align 6
.amdhsa_kernel %s
  .amdhsa_next_free_vgpr 512
  .amdhsa_next_free_sgpr 102
  .amdhsa_accum_offset 256
  .amdhsa_group_segment_fixed_size 0
  .amdhsa_kernarg_size 88
  .amdhsa_user_sgpr_count 2
  .amdhsa_user_sgpr_kernarg_segment_ptr 1
  .amdhsa_system_sgpr_workgroup_id_x 1
.end_amdhsa_kernel""" % k)
    open(path, "w").write(a.text())
    print("instructions:", a.n_ins)

if __name__ == "__main__":
    if len(sys.argv) > 2 and sys.argv[2] == "stamps":
        STAMPS = True
    main(sys.argv[1] if len(sys.argv) > 1 else "cdna_kernels/%s.s" % NAME)
```

```python
import re

TRANS = ("v_exp_f32", "v_log_f32", "v_rcp_f32", "v_rsq_f32", "v_sqrt_f32", "v_sin_f32", "v_cos_f32")
_tok = re.compile(r"(?<![\w.])([vas])(?:\[(\d+):(\d+)\]|(\d+))(?![\w])")

def regs_of(tok):
    out = []
    t = tok.strip()
    t = t.lstrip("-")
    if t.startswith("abs(") or t.startswith("|"):
        t = t.replace("abs(", "").replace(")", "").replace("|", "")
    if t in ("vcc", "exec", "m0", "scc"):
        return [t]
    if t in ("vcc_lo", "vcc_hi"):
        return ["vcc"]
    if t in ("exec_lo", "exec_hi"):
        return ["exec"]
    m = _tok.fullmatch(t)
    if m:
        c = m.group(1)
        if m.group(4) is not None:
            out.append(c + m.group(4))
        else:
            for i in range(int(m.group(2)), int(m.group(3)) + 1):
                out.append(c + str(i))
    return out

class Ins:
    __slots__ = ("op", "kind", "wr", "rd", "srcc", "states", "wide", "trans", "text", "mfma_d")

class Asm:
    def __init__(self):
        self.lines = []
        self.hist = []
        self.vm = []
        self.vm_known = 0
        self.n_ins = 0
        self.bg = []
        self.bg_every = 0
        self._bg_cnt = 0
        self._in_bg = False

    def raw(self, s):
        self.lines.append(s)

    def comment(self, s):
        self.lines.append("    ; " + s)

    def label(self, name):
        self.flush_hazards()
        self.lines.append(name + ":")

    def flush_hazards(self):
        need = 0
        d = 0
        for j in reversed(self.hist):
            if j.kind == "mfma":
                need = max(need, 8 - d)
            elif j.kind == "valu":
                need = max(need, 5 - d)
            elif j.kind == "salu":
                need = max(need, 1 - d)
            elif j.wide:
                need = max(need, 2 - d)
            d += j.states
            if d > 12:
                break
        if need > 0:
            self._nop(need)
        self.hist = []

    def _nop(self, n):
        while n > 0:
            k = min(n, 16)
            self.lines.append("    s_nop %d" % (k - 1))
            ins = Ins(); ins.op = "s_nop"; ins.kind = "nop"; ins.wr = set(); ins.rd = set(); ins.srcc = set()
            ins.states = k; ins.wide = False; ins.trans = False; ins.text = ""; ins.mfma_d = None
            self.hist.append(ins)
            n -= k

    def _classify(self, op, ops, text):
        ins = Ins()
        ins.op = op; ins.text = text; ins.states = 1; ins.wide = False; ins.trans = False
        ins.srcc = set(); ins.mfma_d = None
        R = [regs_of(o) for o in ops]
        flat = lambda l: [x for y in l for x in y]
        if op.startswith("v_mfma"):
            ins.kind = "mfma"
            ins.wr = set(R[0]); ins.rd = set(flat(R[1:3])); ins.srcc = set(R[3]) if len(R) > 3 else set()
            ins.mfma_d = tuple(R[0])
        elif op.startswith("v_"):
            ins.kind = "valu"
            ins.trans = op.replace("_e32", "").replace("_e64", "") in TRANS
            if op.startswith("v_permlane16_swap") or op.startswith("v_permlane32_swap"):
                ins.wr = set(flat(R[:2])); ins.rd = set(flat(R[:2]))
            elif op.startswith("v_cmp"):
                ins.wr = set(R[0]); ins.rd = set(flat(R[1:]))
            elif re.match(r"v_(add|sub|subrev)_co_u32", op):
                ins.wr = set(flat(R[:2])); ins.rd = set(flat(R[2:]))
            elif re.match(r"v_(addc|subb)_co_u32", op):
                ins.wr = set(flat(R[:2])); ins.rd = set(flat(R[2:]))
            elif op.startswith("v_fmac") or op.startswith("v_dot2c") or op.startswith("v_pk_fmac"):
                ins.wr = set(R[0]); ins.rd = set(flat(R))
            elif op.startswith("v_cndmask") and len(ops) == 3:
                ins.wr = set(R[0]); ins.rd = set(flat(R[1:])) | {"vcc"}
            else:
                ins.wr = set(R[0]); ins.rd = set(flat(R[1:]))
        elif op.startswith("buffer_load") or op.startswith("global_load"):
            ins.kind = "vmem"
            if " lds" in text or "_lds_" in op:
                ins.wr = set(); ins.rd = set(flat(R)) | {"m0"}
            else:
                ins.wr = set(R[0]); ins.rd = set(flat(R[1:]))
        elif op.startswith("buffer_store") or op.startswith("global_store") or "atomic" in op and not op.startswith("s_"):
            ins.kind = "vmem"
            ins.wr = set(); ins.rd = set(flat(R))
            ins.wide = op.endswith("x3") or op.endswith("x4")
        elif op.startswith("buffer_inv") or op.startswith("buffer_wbl2"):
            ins.kind = "vmem"
            ins.wr = set(); ins.rd = set()
        elif op.startswith("ds_read") or op.startswith("ds_bpermute") or op.startswith("ds_swizzle"):
            ins.kind = "ds"
            ins.wr = set(R[0]); ins.rd = set(flat(R[1:]))
        elif op.startswith("ds_"):
            ins.kind = "ds"
            ins.wr = set(); ins.rd = set(flat(R))
        elif op.startswith("s_"):
            ins.kind = "salu"
            if op in ("s_waitcnt", "s_barrier", "s_sleep", "s_setprio", "s_endpgm") or op.startswith("s_cbranch") or op == "s_branch":
                ins.wr = set(); ins.rd = set()
            elif op.startswith("s_cmp"):
                ins.wr = {"scc"}; ins.rd = set(flat(R))
            else:
                ins.wr = set(R[0]) if R else set(); ins.rd = set(flat(R[1:]))
                if "saveexec" in op:
                    ins.wr |= {"exec"}; ins.rd |= {"exec"}
        else:
            raise ValueError("unknown op " + op)
        return ins

    def _need(self, I):
        need = 0
        d = 0
        isv = lambda r: r[0] in "va" and r not in ("vcc",)
        for J in reversed(self.hist):
            n = 0
            if J.kind == "valu":
                wv = {r for r in J.wr if isv(r)}
                ws = {r for r in J.wr if not isv(r)}
                if I.kind == "mfma" and wv & (I.rd | I.srcc):
                    n = max(n, 2)
                if I.kind == "valu":
                    if J.trans and not I.trans and wv & I.rd:
                        n = max(n, 1)
                    if (I.op.startswith("v_readfirstlane") or I.op.startswith("v_readlane")) and wv & I.rd:
                        n = max(n, 1)
                    if I.op.startswith("v_permlane") and wv & I.rd:
                        n = max(n, 2)
                    if ("dpp" in I.text or "row_" in I.text) and wv & I.rd:
                        n = max(n, 2)
                    if ws & I.rd:
                        n = max(n, 4 if (I.op.startswith("v_readlane") or I.op.startswith("v_writelane")) else 2)
                if I.kind == "vmem" and ws & I.rd:
                    n = max(n, 5)
                if I.kind == "salu" and ws & I.rd:
                    n = max(n, 1)
            elif J.kind == "mfma":
                if I.kind == "mfma":
                    if J.wr & I.rd:
                        n = max(n, 8)
                    if J.wr & I.srcc:
                        if tuple(sorted(I.srcc)) != tuple(sorted(J.wr)):
                            n = max(n, 6)
                    if J.wr & I.wr and not (J.wr & I.srcc):
                        n = max(n, 6)
                else:
                    if J.wr & (I.rd | I.wr):
                        n = max(n, 8)
                    if I.kind == "valu" and J.srcc & I.wr:
                        n = max(n, 3)
            elif J.kind == "vmem":
                if J.wide and J.rd & I.wr and I.kind in ("valu", "vmem", "ds", "mfma"):
                    n = max(n, 2)
            elif J.kind == "salu":
                if "m0" in J.wr and "m0" in I.rd:
                    n = max(n, 1)
            need = max(need, n - d)
            d += J.states
            if d > 12:
                break
        return need

    def __call__(self, text, tag=None):
        text = text.strip()
        parts = text.split(None, 1)
        op = parts[0]
        rest = parts[1] if len(parts) > 1 else ""
        ops = []
        for o in rest.split(","):
            o = o.strip()
            if o:
                ops.append(o.split()[0])
        I = self._classify(op, ops, text)
        n = self._need(I)
        if n > 0:
            self._nop(n)
        self.lines.append("    " + text)
        self.hist.append(I)
        if len(self.hist) > 40:
            self.hist = self.hist[-30:]
        self.n_ins += 1
        if I.kind == "vmem":
            self.vm.append(tag)
        if self.bg_every and self.bg and not self._in_bg:
            self._bg_cnt += 1
            if self._bg_cnt >= self.bg_every:
                self._bg_cnt = 0
                self._emit_bg()
        return I

    def _emit_bg(self):
        g = self.bg.pop(0)
        self._in_bg = True
        for t, tg in g:
            if callable(t):
                t()
            else:
                self(t, tag=tg)
        self._in_bg = False

    def bg_on(self, every):
        self.bg_every = every; self._bg_cnt = 0

    def bg_off(self):
        self.bg_every = 0

    def bg_flush(self):
        self.bg_every = 0
        while self.bg:
            self._emit_bg()

    def wait_vm(self, tag, extra=""):
        idx = None
        for i in range(len(self.vm) - 1, -1, -1):
            if self.vm[i] == tag:
                idx = i
                break
        if idx is None:
            if extra:
                self("s_waitcnt " + extra)
            return
        n = len(self.vm) - 1 - idx
        n = min(n, 63)
        self(("s_waitcnt vmcnt(%d) " % n + extra).strip())
        self.vm = self.vm[idx + 1:]

    def wait_vm_all(self, extra=""):
        self(("s_waitcnt vmcnt(0) " + extra).strip())
        self.vm = []

    def text(self):
        return "\n".join(self.lines) + "\n"
```

```python
import sys
sys.path.insert(0, "tools")
from emit import Asm

NAME = "gated_mix__linear_kernel_hedgehog__sliding_local_dilated__prompt"
KN = NAME + "_kernel"
WS_KVT = 0
WS_G = 0x20000
WS_OA = 0x40000
WS_OB = 0x40000 + 0x280000
L2E = 0x3fb8aa3b
SCALE = 0x3e64f92e
MF = "v_mfma_f32_16x16x32_bf16"

NB1 = 5
XR = NB1 * 20480
SMALL = XR + 49152
WPHI = SMALL
ZR = SMALL + 3328
KVB = 0
VFR = 81920
PHI = 102400
PHI_STRIDE = 352
HALO = 81920
EXC = 81920 + 30720

STAMPS = False
WS_ST = 0x800000
def stamp(a, n, kern=0):
    if not STAMPS: return
    a("s_memtime s[90:91]")
    a("s_waitcnt lgkmcnt(0)")
    a("v_accvgpr_write_b32 a200, s90")
    a("s_lshl_b32 s92, s2, 2")
    a("s_add_u32 s92, s92, s27")
    a("s_lshl_b32 s92, s92, 8")
    a("s_add_u32 s92, s92, 0x%x" % (WS_ST + kern * 0x20000 + n * 4))
    a("buffer_store_dword a200, off, s[12:15], s92")
    a("s_memrealtime s[90:91]")
    a("s_waitcnt lgkmcnt(0)")
    a("v_accvgpr_write_b32 a201, s90")
    a("buffer_store_dword a201, off, s[12:15], s92 offset:64")
    if n == 0:
        a("v_accvgpr_write_b32 a202, s94")
        a("buffer_store_dword a202, off, s[12:15], s92 offset:128")


def vr(b, n=4):
    return "v[%d:%d]" % (b, b + n - 1)
def ar(b, n=4):
    return "a[%d:%d]" % (b, b + n - 1)

def srd(a, d, lo, hi, size):
    a("s_mov_b32 s%d, s%d" % (d, lo))
    a("s_mov_b32 s%d, s%d" % (d + 1, hi))
    a("s_mov_b32 s%d, 0x%x" % (d + 2, size))
    a("s_mov_b32 s%d, 0x00020000" % (d + 3))

def load_kernargs(a):
    a("s_load_dwordx16 s[64:79], s[0:1], 0")
    a("s_load_dwordx4 s[80:83], s[0:1], 64")
    a("s_load_dwordx2 s[84:85], s[0:1], 80")

def dma_row_decode(a, vdst_p, vdst_cc, i5, vt):
    a("v_add_u32 v%d, %d, v1" % (vt, i5 * 64))
    a("v_mul_u32_u24 v%d, 0x199a, v%d" % (vdst_p, vt))
    a("v_lshrrev_b32 v%d, 16, v%d" % (vdst_p, vdst_p))
    a("v_mul_u32_u24 v%d, 10, v%d" % (vdst_cc, vdst_p))
    a("v_sub_u32 v%d, v%d, v%d" % (vdst_cc, vt, vdst_cc))

def poll(a, name, off, target, vt=15):
    a("s_mov_b32 s29, 0x20000")
    a.label(name)
    a("buffer_load_dword v%d, off, s[16:19], s30 offset:%d sc1" % (vt, off))
    a.wait_vm_all()
    a("v_readfirstlane_b32 s28, v%d" % vt)
    a("s_cmp_ge_u32 s28, %d" % target)
    a("s_cbranch_scc1 %s_done" % name)
    a("s_sleep 4")
    a("s_sub_u32 s29, s29, 1")
    a("s_cmp_lg_u32 s29, 0")
    a("s_cbranch_scc1 %s" % name)
    a.label(name + "_done")

def poll1(a, name, off, target, vt=15, inv=False):
    keep = list(a.vm)
    a("s_cmp_lg_u32 s27, 0")
    a("s_cbranch_scc1 %s_w" % name)
    poll(a, name, off, target, vt)
    a.vm = keep
    a.label(name + "_w")
    a("s_barrier")
    if inv:
        a("buffer_inv sc1")

def signal(a, name, off):
    a("s_cmp_lg_u32 s27, 0")
    a("s_cbranch_scc1 %s" % name)
    a("v_mov_b32 v14, 1")
    a("s_lshl_b32 s28, s21, 2")
    a("s_mov_b64 exec, 1")
    a("buffer_atomic_add v14, off, s[16:19], s28 offset:%d" % off)
    a.vm.pop()
    a("s_mov_b64 exec, -1")
    a.label(name)

def interleave(a, mf, rd, rate=2):
    k = 0; m = len(rd)
    for i, x in enumerate(mf):
        a(x)
        for _ in range(rate):
            if k < m:
                a(rd[k]); k += 1
    while k < m:
        a(rd[k]); k += 1

SEQ = [("P", u) for u in range(10)] + [("Q", u) for u in range(5)]
def ubuf(n):
    return n % 5 if n < 10 else (n - 10) % 4
STEPS = []
for n, (kind, u) in enumerate(SEQ):
    if kind == "P":
        for s in range(2): STEPS.append((n, "P", 2 * u + s, s))
    else:
        for s in range(4): STEPS.append((n, "Q", 4 * u + s, s))
KA = 96; VA = 136; QA = 96; HA = 216; WFA = 180
XP2 = 1; XA0 = 14

def k1_dma(a, n, st="s28"):
    kind, u = SEQ[n]
    buf = ubuf(n)
    if kind == "P":
        a("s_add_u32 %s, s24, 0x%x" % (st, u * 245760))
    else:
        a("s_add_u32 %s, s25, 0x%x" % (st, u * 491520))
    for i5 in range(5):
        a("s_add_u32 m0, s26, %d" % (buf * 20480 + i5 * 1024))
        a("buffer_load_dwordx4 v%d, s[8:11], %s offen lds" % (5 + i5, st), tag=("dma", n))

def q_groups(a, br):
    G = []
    G.append([(lambda: a.wait_vm(("dma", 10)), None), ("s_barrier", None)])
    rr = k1_reads(20, br) + k1_reads(21, br)
    for i in range(0, len(rr), 4):
        G.append([(r, None) for r in rr[i:i + 4]])
    for si in range(20, 40):
        g = [("s_waitcnt lgkmcnt(%d)" % (10 if si < 39 else 0), None)]
        rd = []
        if si + 2 < 40:
            n2 = STEPS[si + 2][0]
            if n2 != STEPS[si + 1][0]:
                g.append(((lambda n2=n2: a.wait_vm(("dma", n2))), None))
                g.append(("s_barrier", None))
                if n2 == 12:
                    g.append(((lambda: k1_dma(a, 14, "s100")), None))
            rd = k1_reads(si + 2, br)
        mf = k1_mfmas(si, br)
        k = 0
        for x in mf:
            g.append((x, None))
            for _ in range(2):
                if k < len(rd):
                    g.append((rd[k], None)); k += 1
            G.append(g); g = []
    return G

def tr_base(img, blk):
    grp = img // 61440
    return (12 if blk else 10) + grp, img - grp * 61440

def fset(si, br=1):
    if STEPS[si][1] == "P":
        return 16 + (si & 1) * 40
    return (16, 36, 56)[si % 3] if br == 1 else (216, 236, 76)[si % 3]
def qacc(br):
    return 96 if br == 1 else 176

def k1_reads(si, br):
    n, kind, ks, sub = STEPS[si]
    buf = ubuf(n)
    fs = fset(si, br)
    out = []
    nt = 10 if kind == "P" else 5
    for j in range(nt):
        t = j % 5
        if kind == "P":
            seg = j // 5
            img = buf * 20480 + (sub * 2 + seg) * 5120
            blk = (seg == 0 and br == 0)
        else:
            img = buf * 20480 + sub * 5120
            blk = (br == 0)
        base, off = tr_base(img, blk)
        co = 8 * t if blk else 32 * t
        for h in range(2):
            out.append("ds_read_b64_tr_b16 %s, v%d offset:%d" % (vr(fs + j * 4 + 2 * h, 2), base, off + h * 2560 + co))
    return out

def k1_mfmas(si, br=1):
    n, kind, ks, sub = STEPS[si]
    fs = fset(si, br)
    out = []
    nt = 10 if kind == "P" else 5
    for j in range(nt):
        t = j % 5
        f = vr(fs + j * 4)
        for P in range(2):
            x = ar((ks * 2 + P) * 4)
            if kind == "Q":
                acc = vr(qacc(br) + (P * 5 + t) * 4)
                out.append("%s %s, %s, %s, %s" % (MF, acc, f, x, "0" if ks == 0 else acc))
            elif j < 5:
                acc = vr(KA + (P * 5 + t) * 4)
                out.append("%s %s, %s, %s, %s" % (MF, acc, f, x, "0" if ks == 0 else acc))
            else:
                acc = vr(VA + (P * 5 + t) * 4)
                out.append("%s %s, %s, %s, %s" % (MF, acc, x, f, "0" if ks == 0 else acc))
    return out

UPRE = 4

def xdma(a, c):
    for j in range(4):
        a("s_add_u32 m0, s23, %d" % ((c % 3) * 4096 + j * 1024))
        a("s_mov_b32 s28, %d" % (j * 10240 + c * 128))
        a("buffer_load_dwordx4 v%d, s[4:7], s28 offen lds" % (4 if j % 2 == 0 else XP2), tag=("xc", c))

def xreads(c):
    out = []
    for p in range(2):
        for P in range(2):
            out.append("ds_read_b128 %s, v%d offset:%d" % (ar(((2 * c + p) * 2 + P) * 4), XA0 + p, (c % 3) * 4096 + P * 2048))
    return out

def wo_prefetch(a):
    a("s_lshr_b32 s28, s2, 3")
    a("s_cmp_lt_u32 s28, 16")
    a("s_cselect_b32 s96, s70, s76")
    a("s_cselect_b32 s97, s71, s77")
    a("s_mov_b32 s98, 819200")
    a("s_mov_b32 s99, 0x00020000")
    a("s_and_b32 s28, s28, 15")
    a("s_mul_i32 s28, s28, 40")
    a("s_mul_i32 s29, s27, 10")
    a("s_add_u32 s28, s28, s29")
    a("s_mul_i32 s28, s28, 1280")
    a("s_and_b32 s29, s2, 1")
    a("s_mul_i32 s29, s29, 640")
    a("s_add_u32 s28, s28, s29")
    a("v_lshlrev_b32 v14, 4, v1")
    a("s_mov_b32 s100, -1")
    a("s_mov_b32 s101, 0xff")
    a("s_mov_b64 exec, s[100:101]")
    for r in range(10):
        a("buffer_load_dwordx4 a[240:243], v14, s[96:99], s28 offen", tag="pf")
        a("s_add_u32 s28, s28, 1280")
    a("s_mov_b64 exec, -1")

def k1_gemm(a, br, phase, first_hook=None):
    if phase == 0:
        a("v_lshrrev_b32 v16, 1, v3")
        a("v_xor_b32 v16, v16, v2")
        a("v_lshlrev_b32 v17, 7, v3")
        a("v_add_u32 v17, s23, v17")
        a("v_lshl_add_u32 v14, v16, 4, v17")
        a("v_xor_b32 v15, 64, v14")
        a("v_xor_b32 v1, 64, v4")
        a.wait_vm(("xc", 0))
        for r in xreads(0):
            a(r)
        a.wait_vm(("dma", 0), "lgkmcnt(0)")
        a("s_barrier")
        xdma(a, 3)
        if first_hook: first_hook()
        lo, hi = 0, 20
    else:
        a.wait_vm(("dma", 10))
        a("s_barrier")
        for r in k1_reads(20, br) + k1_reads(21, br):
            a(r)
        for si in range(20, 40):
            n = STEPS[si][0]
            a("s_waitcnt lgkmcnt(%d)" % (10 if si < 39 else 0))
            rd = []
            if si + 2 < 40:
                n2 = STEPS[si + 2][0]
                if n2 != STEPS[si + 1][0]:
                    a.wait_vm(("dma", n2))
                    a("s_barrier")
                    if n2 == 12:
                        k1_dma(a, 14)
                rd = k1_reads(si + 2, br)
            interleave(a, k1_mfmas(si), rd)
        return
    for r in k1_reads(lo, br):
        a(r)
    pend_x = None
    for si in range(lo, hi):
        n, kind, ks, sub = STEPS[si]
        a("s_waitcnt lgkmcnt(0)")
        if pend_x is not None:
            if pend_x + 3 < 10:
                xdma(a, pend_x + 3)
            pend_x = None
        rd = []
        if si + 1 < hi:
            n2, kind2, ks2, _ = STEPS[si + 1]
            if kind2 == "P" and ks2 % 2 == 0:
                a.wait_vm(("xc", ks2 // 2))
                rd += xreads(ks2 // 2)
                pend_x = ks2 // 2
            if n2 != n:
                a.wait_vm(("dma", n2))
                a("s_barrier")
                if n2 <= 9:
                    k1_dma(a, n2 + 3)
                elif n2 == 11:
                    k1_dma(a, 14)
            rd += k1_reads(si + 1, br)
        interleave(a, k1_mfmas(si), rd)
        if kind == "P" and br == 1:
            a("s_cmp_eq_u32 s27, %d" % (ks & 3))
            a("s_cbranch_scc0 L_h%d" % ks)
            a.wait_vm(("xh", ks >> 2))
            fs = 16 + (si & 1) * 40
            for j in range(10):
                f = vr(fs + j * 4)
                x = ar(160 + (ks >> 2) * 4)
                acc = vr(HA + j * 4)
                if j < 5:
                    a("%s %s, %s, %s, %s" % (MF, acc, f, x, acc))
                else:
                    a("%s %s, %s, %s, %s" % (MF, acc, x, f, acc))
            a.label("L_h%d" % ks)
    if phase == 0:
        a("s_barrier")
        k1_dma(a, 13)
        a("v_and_b32 v1, 63, v0")
        wo_prefetch(a)

def load_wphi_frags(a):
    for tp in range(5):
        for c in range(3):
            f = WFA + (tp * 3 + c) * 4
            a("ds_read_b64_tr_b16 %s, v14 offset:%d" % (ar(f, 2), (8 * c) * 40 + 8 * tp))
            if c < 2:
                a("ds_read_b64_tr_b16 %s, v14 offset:%d" % (ar(f + 2, 2), (8 * c + 4) * 40 + 8 * tp))
            else:
                a("v_accvgpr_write_b32 a%d, 0" % (f + 2))
                a("v_accvgpr_write_b32 a%d, 0" % (f + 3))

def phi_stage(a, acc, out, T):
    kp = T; pk = T + 12; em = T + 32; tmp = T + 52
    for t in range(5):
        a("v_cvt_pk_bf16_f32 v%d, v%d, v%d" % (kp + 2 * t, acc + 4 * t, acc + 4 * t + 1))
        a("v_cvt_pk_bf16_f32 v%d, v%d, v%d" % (kp + 2 * t + 1, acc + 4 * t + 2, acc + 4 * t + 3))
    a("v_mov_b32 v%d, 0" % (kp + 10))
    a("v_mov_b32 v%d, 0" % (kp + 11))
    for c in range(3):
        for tp in range(5):
            d = vr(pk + 4 * tp)
            a("%s %s, %s, %s, %s" % (MF, d, ar(WFA + (tp * 3 + c) * 4), vr(kp + 4 * c), "0" if c == 0 else d))
    for m in range(10):
        a("v_cvt_pk_bf16_f32 v%d, v%d, v%d" % (kp + m, pk + 2 * m, pk + 2 * m + 1))
    for m in range(10):
        a("v_lshlrev_b32 v%d, 16, v%d" % (pk + 2 * m, kp + m))
        a("v_and_b32 v%d, 0xffff0000, v%d" % (pk + 2 * m + 1, kp + m))
    mx = tmp; mn = tmp + 1; s1 = tmp + 2; s2 = tmp + 3
    a("v_max3_f32 v%d, v%d, v%d, v%d" % (mx, pk, pk + 1, pk + 2))
    a("v_min3_f32 v%d, v%d, v%d, v%d" % (mn, pk, pk + 1, pk + 2))
    for m in range(3, 19, 2):
        a("v_max3_f32 v%d, v%d, v%d, v%d" % (mx, mx, pk + m, pk + m + 1))
        a("v_min3_f32 v%d, v%d, v%d, v%d" % (mn, mn, pk + m, pk + m + 1))
    a("v_max_f32 v%d, v%d, v%d" % (mx, mx, pk + 19))
    a("v_min_f32 v%d, v%d, v%d" % (mn, mn, pk + 19))
    a("v_mul_f32 v%d, s31, v%d" % (mx, mx))
    a("v_mul_f32 v%d, s31, v%d" % (mn, mn))
    a("v_mov_b32 v%d, v%d" % (tmp + 5, mx))
    a("v_mov_b32 v%d, v%d" % (tmp + 4, mx))
    a("v_mov_b32 v%d, v%d" % (tmp + 7, mn))
    a("v_mov_b32 v%d, v%d" % (tmp + 6, mn))
    for m in range(10):
        a("v_pk_fma_f32 %s, %s, s[62:63], %s neg_lo:[1,0,0] neg_hi:[1,0,0]" % (vr(em + 2 * m, 2), vr(pk + 2 * m, 2), vr(tmp + 6, 2)))
        a("v_pk_fma_f32 %s, %s, s[62:63], %s neg_lo:[0,0,1] neg_hi:[0,0,1]" % (vr(pk + 2 * m, 2), vr(pk + 2 * m, 2), vr(tmp + 4, 2)))
    for m in range(20):
        a("v_exp_f32 v%d, v%d" % (pk + m, pk + m))
        a("v_exp_f32 v%d, v%d" % (em + m, em + m))
    a("v_pk_add_f32 %s, %s, %s" % (vr(tmp + 4, 2), vr(pk, 2), vr(pk + 2, 2)))
    a("v_pk_add_f32 %s, %s, %s" % (vr(tmp + 6, 2), vr(em, 2), vr(em + 2, 2)))
    for m in range(2, 10):
        a("v_pk_add_f32 %s, %s, %s" % (vr(tmp + 4, 2), vr(tmp + 4, 2), vr(pk + 2 * m, 2)))
        a("v_pk_add_f32 %s, %s, %s" % (vr(tmp + 6, 2), vr(tmp + 6, 2), vr(em + 2 * m, 2)))
    a("v_add_f32 v%d, v%d, v%d" % (s1, tmp + 4, tmp + 5))
    a("v_add_f32 v%d, v%d, v%d" % (s2, tmp + 6, tmp + 7))
    a("v_rcp_f32 v%d, v%d" % (tmp + 4, s1))
    a("v_rcp_f32 v%d, v%d" % (tmp + 6, s2))
    a("v_mov_b32 v%d, v%d" % (tmp + 5, tmp + 4))
    a("v_mov_b32 v%d, v%d" % (tmp + 7, tmp + 6))
    for m in range(10):
        a("v_pk_mul_f32 %s, %s, %s" % (vr(pk + 2 * m, 2), vr(pk + 2 * m, 2), vr(tmp + 4, 2)))
        a("v_pk_mul_f32 %s, %s, %s" % (vr(em + 2 * m, 2), vr(em + 2 * m, 2), vr(tmp + 6, 2)))
    for m in range(10):
        a("v_cvt_pk_bf16_f32 v%d, v%d, v%d" % (out + m, pk + 2 * m, pk + 2 * m + 1))
        a("v_cvt_pk_bf16_f32 v%d, v%d, v%d" % (out + 10 + m, em + 2 * m, em + 2 * m + 1))

def store_frag(a, op, P):
    a("buffer_store_dwordx4 %s, v15, s[12:15], s22 offen offset:%d sc0 sc1" % (vr(op), 0), tag="st")
    a("buffer_store_dwordx4 %s, v15, s[12:15], s22 offen offset:%d sc0 sc1" % (vr(op + 4), 1024), tag="st")
    a("buffer_store_dwordx2 %s, v15, s[12:15], s23 offen sc0 sc1" % (vr(op + 8, 2)), tag="st")
    if P == 0:
        a("s_add_u32 s22, s22, 20480")
        a("s_add_u32 s23, s23, 20480")

def frag_store_setup(a, wsoff):
    a("s_lshl_b32 s22, s20, 3")
    a("s_lshl_b32 s28, s27, 1")
    a("s_add_u32 s22, s22, s28")
    a("s_mul_i32 s22, s22, 20480")
    a("s_add_u32 s22, s22, 0x%x" % wsoff)
    a("s_lshr_b32 s28, s21, 1")
    a("s_mul_i32 s28, s28, 5120")
    a("s_add_u32 s22, s22, s28")
    a("s_add_u32 s23, s22, 2048")
    a("s_and_b32 s28, s21, 1")
    a("s_mul_i32 s29, s28, 3072")
    a("s_add_u32 s22, s22, s29")
    a("s_lshl_b32 s28, s28, 3")
    a("s_add_u32 s23, s23, s28")
    a("v_lshlrev_b32 v15, 4, v1")

def gen_k1(a):
    a.raw(".globl %s\n.p2align 8\n.type %s,@function\n%s:" % (KN, KN, KN))
    a("s_cmp_ge_u32 s2, 256")
    a("s_cbranch_scc1 L_k1_end")
    if STAMPS: a("s_memrealtime s[94:95]")
    load_kernargs(a)
    a("s_and_b32 s28, s2, 7")
    a("s_lshr_b32 s29, s2, 3")
    a("s_lshr_b32 s20, s28, 2")
    a("s_lshl_b32 s20, s20, 3")
    a("s_lshr_b32 s30, s29, 2")
    a("s_add_u32 s20, s20, s30")
    a("s_and_b32 s21, s28, 3")
    a("s_lshl_b32 s21, s21, 2")
    a("s_and_b32 s30, s29, 3")
    a("s_add_u32 s21, s21, s30")
    a("s_lshr_b32 s3, s21, 3")
    a("s_and_b32 s21, s21, 7")
    a("v_and_b32 v1, 63, v0")
    a("v_lshrrev_b32 v2, 6, v0")
    a("v_readfirstlane_b32 s27, v2")
    a("v_lshrrev_b32 v2, 4, v1")
    a("v_and_b32 v3, 15, v1")
    a("s_lshl_b32 s28, s20, 7")
    a("s_lshl_b32 s29, s27, 5")
    a("s_add_u32 s28, s28, s29")
    a("v_lshrrev_b32 v14, 3, v1")
    a("v_add_u32 v4, s28, v14")
    a("v_mul_u32_u24 v4, 1280, v4")
    a("v_lshrrev_b32 v14, 1, v14")
    a("v_and_b32 v15, 7, v1")
    a("v_xor_b32 v14, v14, v15")
    a("v_lshl_add_u32 v4, v14, 4, v4")
    a("s_lshr_b32 s28, s27, 1")
    a("s_mul_i32 s24, s28, 122880")
    a("s_and_b32 s28, s27, 1")
    a("s_add_u32 s28, s28, 1")
    a("s_mul_i32 s28, s28, 1280")
    a("s_add_u32 s24, s24, s28")
    a("s_mul_i32 s28, s21, 160")
    a("s_add_u32 s24, s24, s28")
    a("s_mul_i32 s25, s27, 122880")
    a("s_add_u32 s25, s25, s28")
    a("s_mul_i32 s26, s27, 5120")
    for i5 in range(5):
        dma_row_decode(a, 14, 15, i5, 16)
        a("v_lshrrev_b32 v16, 4, v14")
        a("v_bfe_u32 v17, v14, 2, 2")
        a("v_and_b32 v18, 3, v14")
        a("v_lshlrev_b32 v17, 3, v17")
        a("v_lshl_add_u32 v17, v16, 2, v17")
        a("v_add_u32 v17, v17, v18")
        a("v_mul_u32_u24 v17, 3840, v17")
        a("v_lshl_add_u32 v%d, v15, 4, v17" % (5 + i5))
    a("s_mul_i32 s23, s27, 12288")
    a("s_add_u32 s23, s23, %d" % XR)
    a("v_xor_b32 v240, 64, v4")
    a("s_waitcnt lgkmcnt(0)")
    srd(a, 4, 64, 65, 2621440)
    a("s_cmp_eq_u32 s3, 0")
    a("s_cselect_b32 s8, s66, s74")
    a("s_cselect_b32 s9, s67, s75")
    a("s_mov_b32 s10, 2457600")
    a("s_mov_b32 s11, 0x00020000")
    srd(a, 12, 84, 85, 0x10000000)
    srd(a, 16, 82, 83, 256)
    a("s_or_b32 s28, s3, s27")
    a("s_cmp_lg_u32 s28, 0")
    a("s_cbranch_scc1 L_nz")
    a("v_mov_b32 v16, 0"); a("v_mov_b32 v17, 0"); a("v_mov_b32 v18, 0"); a("v_mov_b32 v19, 0")
    a("v_lshlrev_b32 v15, 4, v1")
    a("s_lshl_b32 s28, s21, 14")
    a("s_lshl_b32 s29, s20, 10")
    a("s_add_u32 s28, s28, s29")
    a("buffer_store_dwordx4 v[16:19], v15, s[12:15], s28 offen sc0 sc1")
    a.vm.pop()
    a.label("L_nz")
    a("v_mov_b32 v241, v1")
    a("v_mov_b32 v1, v240")
    xdma(a, 0)
    k1_dma(a, 0)
    xdma(a, 1)
    k1_dma(a, 1)
    xdma(a, 2)
    k1_dma(a, 2)
    k1_dma(a, 3)
    a("v_mov_b32 v1, v241")
    stamp(a, 0)
    a("v_lshrrev_b32 v16, 2, v3")
    a("v_and_b32 v17, 3, v3")
    a("v_lshl_add_u32 v16, v2, 2, v16")
    a("v_mul_u32_u24 v16, 160, v16")
    a("v_lshl_add_u32 v10, v17, 3, v16")
    a("v_add_u32 v11, 61440, v10")
    a("v_mul_u32_u24 v17, 40, v17")
    a("v_add_u32 v12, v16, v17")
    a("v_add_u32 v13, 61440, v12")
    a("s_mov_b32 s31, 0x%x" % L2E)
    a("s_mov_b32 s62, s31")
    a("s_mov_b32 s63, s31")
    a("s_cmp_eq_u32 s3, 0")
    a("s_cbranch_scc0 L_k1_B")
    vm_snapshot = list(a.vm)

    srd(a, 32, 68, 69, 25600)
    a("s_mul_i32 s28, s21, 3200")
    a("v_lshlrev_b32 v15, 4, v0")
    a("buffer_load_dwordx4 v[16:19], v15, s[32:35], s28 offen", tag="wphi")
    a("v_mov_b32 v20, 0"); a("v_mov_b32 v21, 0"); a("v_mov_b32 v22, 0"); a("v_mov_b32 v23, 0")
    a("v_add_u32 v24, %d, v15" % ZR)
    a("v_cmp_gt_u32 vcc, 128, v0")
    a("s_and_saveexec_b64 s[28:29], vcc")
    a("ds_write_b128 v24, v[20:23]")
    a("s_mov_b64 exec, s[28:29]")
    a.wait_vm("wphi")
    a("v_add_u32 v24, %d, v15" % WPHI)
    a("v_cmp_gt_u32 vcc, 200, v0")
    a("s_and_saveexec_b64 s[28:29], vcc")
    a("ds_write_b128 v24, v[16:19]")
    a("s_mov_b64 exec, s[28:29]")
    stamp(a, 1)
    def hookZ():
        a("v_mov_b32 v16, v14")
        signal(a, "L_sz", 0)
        a("v_mov_b32 v14, v16")
    k1_gemm(a, 0, 0, hookZ)
    stamp(a, 2)
    a("s_lshl_b32 s30, s21, 2")
    a("buffer_load_dword a250, off, s[16:19], s30 sc1", tag="zf")
    a("v_lshrrev_b32 v16, 2, v3")
    a("v_and_b32 v17, 3, v3")
    a("v_mul_u32_u24 v18, 800, v2")
    a("v_mul_u32_u24 v16, 40, v16")
    a("v_add_u32 v18, v18, v16")
    a("v_add_u32 v18, %d, v18" % WPHI)
    a("v_mov_b32 v19, %d" % ZR)
    a("v_cmp_eq_u32 vcc, v17, v2")
    a("v_cndmask_b32 v14, v19, v18, vcc")
    load_wphi_frags(a)
    a("v_lshlrev_b32 v15, 4, v1")
    a("s_mul_i32 s28, s27, 5120")
    a("s_add_u32 s28, s28, %d" % VFR)
    a("v_add_u32 v15, s28, v15")
    for t in range(5):
        for P in range(2):
            b = VA + (P * 5 + t) * 4
            a("v_cvt_pk_bf16_f32 v%d, v%d, v%d" % (16 + t * 4 + 2 * P, b, b + 1))
            a("v_cvt_pk_bf16_f32 v%d, v%d, v%d" % (16 + t * 4 + 2 * P + 1, b + 2, b + 3))
        a("ds_write_b128 v15, %s offset:%d" % (vr(16 + t * 4), t * 1024))
    a("s_waitcnt lgkmcnt(0)")
    a("s_lshl_b32 s28, s27, 5")
    a("v_add_u32 v15, s28, v3")
    a("v_mul_u32_u24 v15, %d, v15" % PHI_STRIDE)
    a("v_mul_u32_u24 v16, 80, v2")
    a("v_add_u32 v15, v15, v16")
    a("v_add_u32 v15, %d, v15" % PHI)
    for P in range(2):
        phi_stage(a, KA + P * 20, 136 + P * 20, 16)
        for c in range(5):
            a("ds_write_b128 v15, %s offset:%d" % (vr(136 + P * 20 + 4 * c), P * 16 * PHI_STRIDE + 16 * c))
    a("s_waitcnt lgkmcnt(0)")
    a("s_barrier")
    stamp(a, 3)
    a("v_lshrrev_b32 v16, 2, v3")
    a("v_and_b32 v17, 3, v3")
    a("v_lshl_add_u32 v16, v2, 2, v16")
    a("v_mul_u32_u24 v16, %d, v16" % PHI_STRIDE)
    a("v_lshl_add_u32 v16, v17, 3, v16")
    a("s_mul_i32 s28, s27, 80")
    a("s_add_u32 s28, s28, %d" % PHI)
    a("v_add_u32 v16, s28, v16")
    a("v_lshlrev_b32 v17, 4, v1")
    a("s_lshl_b32 s28, s27, 10")
    a("s_add_u32 s28, s28, %d" % VFR)
    a("v_add_u32 v17, s28, v17")
    for q in range(4):
        a("v_mov_b32 v%d, 0x3f803f80" % (20 + q))
    KVA = 96
    for s4 in range(4):
        pf = 24 + (s4 & 1) * 20
        for ft in range(3):
            for h in range(2):
                a("ds_read_b64_tr_b16 %s, v16 offset:%d" % (vr(pf + ft * 4 + 2 * h, 2), (s4 * 32 + h * 16) * PHI_STRIDE + 32 * ft))
        for tt in range(2):
            a("ds_read_b128 %s, v17 offset:%d" % (vr(pf + 12 + tt * 4), s4 * 5120 + tt * 1024))
        a("s_waitcnt lgkmcnt(0)")
        for ft in range(3):
            for tt in range(3):
                d = vr(KVA + (ft * 3 + tt) * 4)
                A_ = vr(pf + 12 + tt * 4) if tt < 2 else vr(20)
                a("%s %s, %s, %s, %s" % (MF, d, A_, vr(pf + ft * 4), "0" if s4 == 0 else d))
    a.bg_off()
    stamp(a, 4)
    a.wait_vm("zf")
    a("v_accvgpr_read_b32 v15, a250")
    a("v_readfirstlane_b32 s28, v15")
    a("s_cmp_ge_u32 s28, 16")
    a("s_cbranch_scc1 L_pz_ok")
    keep = list(a.vm)
    poll(a, "L_pz", 0, 16)
    a.vm = keep
    a.label("L_pz_ok")
    a("v_mul_u32_u24 v15, 640, v2")
    a("v_lshl_add_u32 v15, v3, 2, v15")
    a("s_lshl_b32 s28, s21, 14")
    a("s_mul_i32 s29, s27, 2720")
    a("s_add_u32 s28, s28, s29")
    a("v_cmp_ge_u32 s[32:33], v2, s27")
    a("v_cmp_le_u32 s[34:35], v2, s27")
    a("v_cmp_gt_u32 s[36:37], 8, v3")
    a("s_and_b64 s[38:39], s[32:33], s[36:37]")
    a("s_and_b64 s[40:41], s[34:35], s[36:37]")
    for tt in range(2):
        for ft in range(3):
            msk = (32 if tt == 0 else 34) if ft < 2 else (38 if tt == 0 else 40)
            a("s_mov_b64 exec, s[%d:%d]" % (msk, msk + 1))
            for r in range(4):
                a("buffer_atomic_add_f32 v%d, v15, s[12:15], s28 offen offset:%d" %
                  (KVA + (ft * 3 + tt) * 4 + r, tt * 2560 + r * 160 + ft * 64), tag="atom")
    a("s_lshl_b32 s28, s21, 14")
    a("s_mul_i32 s29, s27, 3360")
    a("s_add_u32 s28, s28, s29")
    for ft in range(3):
        a("s_mov_b64 exec, 0x%x" % (0xffff if ft < 2 else 0xff))
        a("buffer_atomic_add_f32 v%d, v15, s[12:15], s28 offen offset:%d" % (KVA + (ft * 3 + 2) * 4, 3200 + ft * 64), tag="atom")
    a("s_mov_b64 exec, -1")
    stamp(a, 5)
    PQ = 136
    a.bg = q_groups(a, 0)
    a.bg_flush()
    a.wait_vm("atom")
    a("s_barrier")
    signal(a, "L_sc", 32)
    stamp(a, 6)
    phi_stage(a, 176, PQ, 16)
    phi_stage(a, 196, PQ + 20, 16)
    stamp(a, 7)
    a("s_lshl_b32 s30, s21, 2")
    poll1(a, "L_pc", 32, 16)
    stamp(a, 8)
    a("v_lshlrev_b32 v15, 4, v0")
    a("s_lshl_b32 s28, s21, 14")
    for q in range(4):
        a("buffer_load_dwordx4 %s, v15, s[12:15], s28 offen sc1" % vr(16 + 4 * q), tag="kv")
        a("s_add_u32 s28, s28, 4096")
    a("v_lshlrev_b32 v15, 3, v0")
    a("v_add_u32 v15, %d, v15" % KVB)
    a.wait_vm("kv")
    for q in range(4):
        a("v_cvt_pk_bf16_f32 v%d, v%d, v%d" % (32 + 2 * q, 16 + 4 * q, 17 + 4 * q))
        a("v_cvt_pk_bf16_f32 v%d, v%d, v%d" % (33 + 2 * q, 18 + 4 * q, 19 + 4 * q))
        a("ds_write_b64 v15, %s offset:%d" % (vr(32 + 2 * q, 2), q * 2048))
    a("v_lshrrev_b32 v16, 2, v3")
    a("v_and_b32 v17, 3, v3")
    a("v_mul_u32_u24 v18, 21, v2")
    a("v_add_u32 v19, v18, v17")
    a("v_mul_u32_u24 v19, 80, v19")
    a("v_add_u32 v19, %d, v19" % KVB)
    a("v_mul_u32_u24 v18, 80, v18")
    a("v_add_u32 v18, %d, v18" % (KVB + 1600))
    a("v_mov_b32 v20, %d" % ZR)
    a("v_cmp_eq_u32 vcc, v16, v2")
    a("v_cndmask_b32 v16, v20, v19, vcc")
    a("v_cndmask_b32 v17, v20, v18, vcc")
    a("s_waitcnt lgkmcnt(0)")
    a("s_barrier")
    NUM = 40
    for t in range(6):
        fb = 216 + (t & 1) * 20
        for c in range(5):
            if t < 5:
                a("ds_read_b128 %s, v16 offset:%d" % (vr(fb + 4 * c), 320 * t + 16 * c))
            else:
                a("ds_read_b128 %s, v17 offset:%d" % (vr(fb + 4 * c), 16 * c))
        a("s_waitcnt lgkmcnt(0)")
        for c in range(5):
            for P in range(2):
                d = vr(NUM + (P * 6 + t) * 4)
                a("%s %s, %s, %s, %s" % (MF, d, vr(fb + 4 * c), vr(PQ + P * 20 + 4 * c), "0" if c == 0 else d))
    frag_store_setup(a, WS_OA)
    for P in range(2):
        nb = NUM + P * 24
        dn = nb + 20
        a("v_cvt_pk_bf16_f32 v%d, v%d, v%d" % (dn, dn, dn))
        a("v_lshlrev_b32 v%d, 16, v%d" % (dn, dn))
        a("v_add_f32 v%d, 0x358637bd, v%d" % (dn, dn))
        a("v_cvt_pk_bf16_f32 v%d, v%d, v%d" % (dn, dn, dn))
        a("v_lshlrev_b32 v%d, 16, v%d" % (dn, dn))
        a("v_rcp_f32 v%d, v%d" % (dn, dn))
        op = 100 + P * 12
        for m in range(10):
            a("v_cvt_pk_bf16_f32 v%d, v%d, v%d" % (op + m, nb + 2 * m, nb + 2 * m + 1))
        for m in range(10):
            a("v_lshlrev_b32 v%d, 16, v%d" % (nb + 2 * m, op + m))
            a("v_and_b32 v%d, 0xffff0000, v%d" % (nb + 2 * m + 1, op + m))
        for m in range(20):
            a("v_mul_f32 v%d, v%d, v%d" % (nb + m, nb + m, dn))
        for m in range(10):
            a("v_cvt_pk_bf16_f32 v%d, v%d, v%d" % (op + m, nb + 2 * m, nb + 2 * m + 1))
        store_frag(a, op, P)
    stamp(a, 9)
    a("s_branch L_p2")

    a.label("L_k1_B")
    a.vm = list(vm_snapshot)
    a("s_lshl_b32 s28, s20, 7")
    a("s_sub_u32 s28, s28, 16")
    a("v_add_u32 v14, s28, v3")
    a("v_mul_i32_i24 v14, 1280, v14")
    a("v_lshl_add_u32 v14, v2, 4, v14")
    a("s_lshl_b32 s28, s27, 6")
    for q in range(5):
        a("buffer_load_dwordx4 %s, v14, s[4:7], s28 offen offset:%d" % (ar(160 + 4 * q), q * 256), tag=("xh", q))
    for q in range(40):
        a("v_mov_b32 v%d, 0" % (HA + q))
    srd(a, 32, 78, 79, 1280)
    a("v_lshrrev_b32 v14, 4, v0")
    a("s_lshl_b32 s28, s20, 7")
    a("s_lshl_b32 s29, s21, 4")
    a("s_add_u32 s28, s28, s29")
    a("v_add_u32 v14, s28, v14")
    a("v_mul_u32_u24 v15, 1280, v14")
    a("v_lshl_add_u32 v15, v3, 4, v15")
    a("v_lshlrev_b32 v16, 4, v3")
    for c in range(5):
        a("buffer_load_dwordx4 %s, v15, s[4:7], 0 offen offset:%d" % (vr(20 + 4 * c), 256 * c), tag="gx")
        a("buffer_load_dwordx4 %s, v16, s[32:35], 0 offen offset:%d" % (vr(40 + 4 * c), 256 * c), tag="gx")
    a.wait_vm("gx")
    a("v_mov_b32 v60, 0")
    a("v_mov_b32 v61, 0")
    for m in range(20):
        a("v_lshlrev_b32 v62, 16, v%d" % (20 + m))
        a("v_and_b32 v63, 0xffff0000, v%d" % (20 + m))
        a("v_lshlrev_b32 v64, 16, v%d" % (40 + m))
        a("v_and_b32 v65, 0xffff0000, v%d" % (40 + m))
        a("v_mul_f32 v62, v62, v64")
        a("v_mul_f32 v63, v63, v65")
        a("v_cvt_pk_bf16_f32 v62, v62, v63")
        a("v_lshlrev_b32 v63, 16, v62")
        a("v_and_b32 v62, 0xffff0000, v62")
        a("v_add_f32 v60, v60, v63")
        a("v_add_f32 v61, v61, v62")
    a("v_add_f32 v60, v60, v61")
    for sh in (8, 4, 2, 1):
        a("v_add_f32_dpp v60, v60, v60 row_ror:%d row_mask:0xf bank_mask:0xf" % sh)
    a("v_cvt_pk_bf16_f32 v60, v60, v60")
    a("v_lshlrev_b32 v60, 16, v60")
    a("v_mul_f32 v60, s31, v60")
    a("v_exp_f32 v60, -v60")
    a("v_add_f32 v60, 1.0, v60")
    a("v_rcp_f32 v60, v60")
    a("v_cvt_pk_bf16_f32 v60, v60, v60")
    a("v_lshlrev_b32 v60, 16, v60")
    a("v_lshlrev_b32 v14, 2, v14")
    a("v_cmp_eq_u32 vcc, 0, v3")
    a("s_and_saveexec_b64 s[28:29], vcc")
    a("s_mov_b32 s36, 0x%x" % WS_G)
    a("buffer_store_dword v60, v14, s[12:15], s36 offen sc0 sc1", tag="gst")
    a("s_mov_b64 exec, s[28:29]")
    stamp(a, 10)
    a("v_lshlrev_b32 v14, 2, v2")
    a("v_sub_u32 v14, v3, v14")
    for r in range(4):
        a("v_subrev_u32 v15, %d, v14" % r)
        a("v_and_b32 v16, 1, v15")
        a("v_cmp_eq_u32 vcc, 0, v16")
        a("v_cmp_le_i32 s[28:29], 0, v15")
        a("s_and_b64 s[%d:%d], vcc, s[28:29]" % (32 + 2 * r, 33 + 2 * r))
        a("v_cmp_ge_i32 s[28:29], -2, v15")
        a("s_and_b64 s[%d:%d], vcc, s[28:29]" % (40 + 2 * r, 41 + 2 * r))
    a("s_or_b32 s28, s20, s27")
    a("s_cmp_eq_u32 s28, 0")
    for r in range(4):
        a("s_cselect_b64 s[%d:%d], 0, s[%d:%d]" % (48 + 2 * r, 49 + 2 * r, 40 + 2 * r, 41 + 2 * r))
    a("s_mov_b32 s56, 0xffff0000"); a("s_mov_b32 s57, -1")
    a("s_mov_b32 s58, 0"); a("s_mov_b32 s59, -1")
    a("s_mov_b32 s60, 0"); a("s_mov_b32 s61, 0xffff0000")
    stamp(a, 1)
    k1_gemm(a, 1, 0)
    stamp(a, 2)
    KP = 176; VP = 136; QP = 76
    for P in range(2):
        for t in range(5):
            b = KA + (P * 5 + t) * 4
            a("v_cvt_pk_bf16_f32 v%d, v%d, v%d" % (KP + (P + 1) * 10 + 2 * t, b, b + 1))
            a("v_cvt_pk_bf16_f32 v%d, v%d, v%d" % (KP + (P + 1) * 10 + 2 * t + 1, b + 2, b + 3))
            b = VA + (P * 5 + t) * 4
            a("v_cvt_pk_bf16_f32 v%d, v%d, v%d" % (16 + (P * 5 + t) * 2, b, b + 1))
            a("v_cvt_pk_bf16_f32 v%d, v%d, v%d" % (17 + (P * 5 + t) * 2, b + 2, b + 3))
    for P in range(2):
        for t in range(5):
            a("v_mov_b32 v%d, v%d" % (VP + t * 6 + 2 + 2 * P, 16 + (P * 5 + t) * 2))
            a("v_mov_b32 v%d, v%d" % (VP + t * 6 + 3 + 2 * P, 17 + (P * 5 + t) * 2))
    a("v_lshlrev_b32 v15, 3, v1")
    a("s_mul_i32 s28, s27, 5120")
    a("s_add_u32 s28, s28, %d" % EXC)
    a("v_add_u32 v15, s28, v15")
    for t in range(5):
        a("ds_write_b64 v15, %s offset:%d" % (vr(KP + 20 + 2 * t, 2), t * 512))
        a("ds_write_b64 v15, %s offset:%d" % (vr(VP + t * 6 + 4, 2), 2560 + t * 512))
    a("v_lshlrev_b32 v14, 4, v1")
    a("v_add_u32 v14, %d, v14" % HALO)
    a("s_cmp_eq_u32 s27, 0")
    a("s_cbranch_scc1 L_b_w0")
    a("s_mul_i32 s28, s27, 10240")
    a("s_sub_u32 s28, s28, 10240")
    a("v_add_u32 v96, s28, v14")
    for j in range(10):
        a("ds_write_b128 v96, %s offset:%d" % (vr(HA + 4 * j), j * 1024))
    a.label("L_b_w0")
    a("s_waitcnt lgkmcnt(0)")
    a("s_barrier")
    a("s_cmp_eq_u32 s27, 0")
    a("s_cbranch_scc0 L_b_nw0")
    for ww in range(3):
        for j in range(10):
            a("ds_read_b128 %s, v14 offset:%d" % (vr(96 + 4 * j), ww * 10240 + j * 1024))
        a("s_waitcnt lgkmcnt(0)")
        for q in range(40):
            a("v_add_f32 v%d, v%d, v%d" % (HA + q, HA + q, 96 + q))
    for t in range(5):
        b = HA + t * 4
        a("v_cvt_pk_bf16_f32 v%d, v%d, v%d" % (KP + 2 * t, b, b + 1))
        a("v_cvt_pk_bf16_f32 v%d, v%d, v%d" % (KP + 2 * t + 1, b + 2, b + 3))
        b = HA + 20 + t * 4
        a("v_cvt_pk_bf16_f32 v%d, v%d, v%d" % (VP + t * 6, b, b + 1))
        a("v_cvt_pk_bf16_f32 v%d, v%d, v%d" % (VP + t * 6 + 1, b + 2, b + 3))
    a("s_branch L_b_j")
    a.label("L_b_nw0")
    a("v_subrev_u32 v15, 5120, v15")
    for t in range(5):
        a("ds_read_b64 %s, v15 offset:%d" % (vr(KP + 2 * t, 2), t * 512))
        a("ds_read_b64 %s, v15 offset:%d" % (vr(VP + t * 6, 2), 2560 + t * 512))
    a("s_waitcnt lgkmcnt(0)")
    a.label("L_b_j")
    stamp(a, 5)
    k1_gemm(a, 1, 1)
    for P in range(2):
        for t in range(5):
            b = QA + (P * 5 + t) * 4
            a("v_cvt_pk_bf16_f32 v%d, v%d, v%d" % (QP + P * 10 + 2 * t, b, b + 1))
            a("v_cvt_pk_bf16_f32 v%d, v%d, v%d" % (QP + P * 10 + 2 * t + 1, b + 2, b + 3))
    stamp(a, 6)
    a("v_mov_b32 v14, 0xf149f2ca")
    a("s_mov_b32 s30, 0x%x" % SCALE)
    frag_store_setup(a, WS_OB)
    H = range(4)
    def QM(h): return 96 + h * 4
    def TM(h): return 112 + h * 6
    def SBr(h): return 206 + h * 8
    OACC = 16
    for P in range(2):
        for h in H:
            for q in range(2):
                src = QP + P * 10 + 2 * h + q
                if h == 0:
                    a("v_mov_b32 v%d, v%d" % (QM(h) + q, src))
                else:
                    a("v_cndmask_b32 v%d, 0, v%d, s[%d:%d]" % (QM(h) + q, src, 54 + 2 * h, 55 + 2 * h))
                src = QP + P * 10 + 2 * h + 2 + q
                if h == 3:
                    a("v_mov_b32 v%d, v%d" % (QM(h) + 2 + q, src))
                else:
                    a("v_cndmask_b32 v%d, v%d, 0, s[%d:%d]" % (QM(h) + 2 + q, src, 56 + 2 * h, 57 + 2 * h))
        for h in H:
            a("%s %s, %s, %s, 0" % (MF, vr(SBr(h)), vr(KP + P * 10 + 2 * h), vr(QM(h))))
            a("%s %s, %s, %s, 0" % (MF, vr(SBr(h) + 4), vr(KP + (P + 1) * 10 + 2 * h), vr(QM(h))))
        for rnd in range(2):
            for h in H:
                for m in range(4):
                    a("v_cvt_pk_bf16_f32 v%d, v%d, v%d" % (TM(h) + m, SBr(h) + 2 * m, SBr(h) + 2 * m + 1))
            for h in H:
                for m in range(4):
                    a("v_lshlrev_b32 v%d, 16, v%d" % (SBr(h) + 2 * m, TM(h) + m))
                    a("v_and_b32 v%d, 0xffff0000, v%d" % (SBr(h) + 2 * m + 1, TM(h) + m))
            if rnd == 0:
                for h in H:
                    for m in range(8):
                        a("v_mul_f32 v%d, s30, v%d" % (SBr(h) + m, SBr(h) + m))
        for h in H:
            for r in range(4):
                mp = (48 if P == 0 else 40) + 2 * r
                a("v_cndmask_b32 v%d, v14, v%d, s[%d:%d]" % (SBr(h) + r, SBr(h) + r, mp, mp + 1))
                a("v_cndmask_b32 v%d, v14, v%d, s[%d:%d]" % (SBr(h) + 4 + r, SBr(h) + 4 + r, 32 + 2 * r, 33 + 2 * r))
        for h in H:
            s = SBr(h); mx = TM(h) + 4
            a("v_max3_f32 v%d, v%d, v%d, v%d" % (mx, s, s + 1, s + 2))
            a("v_max3_f32 v%d, v%d, v%d, v%d" % (mx, mx, s + 3, s + 4))
            a("v_max3_f32 v%d, v%d, v%d, v%d" % (mx, mx, s + 5, s + 6))
            a("v_max_f32 v%d, v%d, v%d" % (mx, mx, s + 7))
        def xred(op):
            for sw in ("v_permlane16_swap_b32", "v_permlane32_swap_b32"):
                for h in H:
                    a("v_mov_b32 v%d, v%d" % (TM(h) + 5, TM(h) + 4))
                for h in H:
                    a("%s v%d, v%d" % (sw, TM(h) + 4, TM(h) + 5))
                for h in H:
                    a("%s v%d, v%d, v%d" % (op, TM(h) + 4, TM(h) + 4, TM(h) + 5))
        xred("v_max_f32")
        for h in H:
            a("v_mul_f32 v%d, s31, v%d" % (TM(h) + 4, TM(h) + 4))
        for h in H:
            for m in range(8):
                a("v_fma_f32 v%d, v%d, s31, -v%d" % (SBr(h) + m, SBr(h) + m, TM(h) + 4))
        for h in H:
            for m in range(8):
                a("v_exp_f32 v%d, v%d" % (SBr(h) + m, SBr(h) + m))
        for h in H:
            s = SBr(h); sm = TM(h) + 4
            a("v_add_f32 v%d, v%d, v%d" % (sm, s, s + 1))
            for m in range(2, 8):
                a("v_add_f32 v%d, v%d, v%d" % (sm, sm, s + m))
        xred("v_add_f32")
        for h in H:
            a("v_rcp_f32 v%d, v%d" % (TM(h) + 4, TM(h) + 4))
        for h in H:
            for m in range(8):
                a("v_mul_f32 v%d, v%d, v%d" % (SBr(h) + m, SBr(h) + m, TM(h) + 4))
        for h in H:
            for m in range(4):
                a("v_cvt_pk_bf16_f32 v%d, v%d, v%d" % (TM(h) + m, SBr(h) + 2 * m, SBr(h) + 2 * m + 1))
        for h in H:
            for tt in range(2):
                t = h + tt
                a("%s %s, %s, %s, 0" % (MF, vr(OACC + (h * 2 + tt) * 4), vr(VP + t * 6 + 2 * P), vr(TM(h))))
        OP = 48 + P * 10
        for t in range(5):
            if t == 0:
                src = OACC + 0
            elif t == 4:
                src = OACC + (3 * 2 + 1) * 4
            else:
                src = OACC + (t * 2) * 4
                oth = OACC + ((t - 1) * 2 + 1) * 4
                for r in range(4):
                    a("v_cndmask_b32 v%d, v%d, v%d, s[%d:%d]" % (src + r, oth + r, src + r, 54 + 2 * t, 55 + 2 * t))
            a("v_cvt_pk_bf16_f32 v%d, v%d, v%d" % (OP + 2 * t, src, src + 1))
            a("v_cvt_pk_bf16_f32 v%d, v%d, v%d" % (OP + 2 * t + 1, src + 2, src + 3))
        store_frag(a, OP, P)
    stamp(a, 9)

NB2 = 8
def p2_dma(a, u):
    buf = u % NB2
    br = 1 if u < 5 else 0
    a("s_add_u32 s28, s27, %d" % (4 * (u % 5)))
    a("s_mul_i32 s29, s28, 13")
    a("s_lshr_b32 s29, s29, 6")
    a("s_mul_i32 s36, s29, 5")
    a("s_sub_u32 s28, s28, s36")
    a("s_mul_i32 s29, s29, 160")
    a("s_cmp_ge_u32 s28, 3")
    a("s_cselect_b32 s36, 80, 0")
    a("s_cselect_b32 s38, 3, 0")
    a("s_add_u32 s29, s29, s36")
    a("s_sub_u32 s36, s28, s38")
    a("s_mul_i32 s36, s36, %d" % (32 if br else 8))
    a("s_add_u32 s29, s29, s36")
    a("s_mul_i32 s29, s29, 1280")
    a("s_add_u32 s29, s29, s23")
    srdn = 8 if br else 40
    pat = 5 if br else 216
    a("s_cmp_eq_u32 s28, 2")
    a("s_cbranch_scc1 L_p2y%d" % u)
    keep = list(a.vm)
    for i5 in range(5):
        a("s_add_u32 m0, s26, %d" % (buf * 20480 + i5 * 1024))
        a("buffer_load_dwordx4 v%d, s[%d:%d], s29 offen lds" % (pat + i5, srdn, srdn + 3), tag=("dma2", u))
    a("s_branch L_p2j%d" % u)
    a.label("L_p2y%d" % u)
    a.vm = keep
    for i5 in range(5):
        a("s_add_u32 m0, s26, %d" % (buf * 20480 + i5 * 1024))
        a("buffer_load_dwordx4 v%d, s[%d:%d], s29 offen lds" % (pat + 5 + i5, srdn, srdn + 3), tag=("dma2", u))
    a.label("L_p2j%d" % u)

def p2_reads(kk):
    u = kk >> 2; sub = kk & 3; buf = u % NB2
    img = buf * 20480 + sub * 5120
    base = 20 + img // 61440
    img -= (img // 61440) * 61440
    out = []
    for t in range(5):
        f = 24 + (kk % 3) * 20 + t * 4
        for h in range(2):
            out.append("ds_read_b64_tr_b16 %s, v%d offset:%d" % (vr(f + 2 * h, 2), base, img + h * 2560 + 32 * t))
    return out

def gen_k2(a):
    a.label("L_p2")
    a.vm = ["st"] * 8
    a("s_lshl_b32 s37, s20, 2")
    a("s_lshl_b32 s28, s3, 6")
    a("s_sub_u32 s37, s37, s28")
    a("s_add_u32 s37, s37, 64")
    a("s_and_b32 s28, s2, 7")
    a("s_lshr_b32 s29, s2, 3")
    a("s_lshr_b32 s20, s28, 1")
    a("s_lshl_b32 s20, s20, 3")
    a("s_lshr_b32 s30, s29, 2")
    a("s_add_u32 s20, s20, s30")
    a("s_and_b32 s21, s28, 1")
    a("s_lshl_b32 s21, s21, 2")
    a("s_and_b32 s30, s29, 3")
    a("s_add_u32 s21, s21, s30")
    a("s_mul_i32 s23, s21, 160")
    a("v_lshlrev_b32 v4, 4, v1")
    for i5 in range(5):
        dma_row_decode(a, 24, 25, i5, 26)
        a("v_lshrrev_b32 v26, 4, v24")
        a("v_bfe_u32 v27, v24, 2, 2")
        a("v_and_b32 v28, 3, v24")
        a("v_lshlrev_b32 v25, 4, v25")
        a("v_mul_u32_u24 v31, 80, v26")
        a("v_mul_u32_u24 v30, 1280, v24")
        a("v_add_u32 v%d, v25, v30" % (5 + i5))
        a("v_lshl_add_u32 v29, v27, 2, v28")
        a("v_add_u32 v30, v31, v29")
        a("v_mul_u32_u24 v30, 1280, v30")
        a("v_add_u32 v%d, v25, v30" % (10 + i5))
        a("v_mul_u32_u24 v29, 20, v27")
        a("v_add_u32 v29, v29, v28")
        a("v_lshl_add_u32 v30, v26, 2, v29")
        a("v_mul_u32_u24 v30, 1280, v30")
        a("v_add_u32 v%d, v25, v30" % (216 + i5))
        a("v_add_u32 v30, v31, v29")
        a("v_mul_u32_u24 v30, 1280, v30")
        a("v_add_u32 v%d, v25, v30" % (221 + i5))
    a.wait_vm_all()
    a("s_barrier")
    a("s_cmp_lg_u32 s27, 0")
    a("s_cbranch_scc1 L_p2_ns")
    a("v_mov_b32 v24, 1")
    a("s_mov_b64 exec, 1")
    a("buffer_atomic_add v24, off, s[16:19], s37 offset:64")
    a.vm.pop()
    a("s_mov_b64 exec, -1")
    a.label("L_p2_ns")
    srd(a, 8, 76, 77, 819200)
    srd(a, 40, 70, 71, 819200)
    srd(a, 32, 80, 81, 2621440)
    a("s_lshl_b32 s22, s20, 2")
    a("s_add_u32 s22, s22, s27")
    a("s_mul_i32 s22, s22, 20480")
    for u in range(4):
        p2_dma(a, u)
    a("s_lshr_b32 s30, s20, 1")
    a("s_lshl_b32 s30, s30, 2")
    stamp(a, 11)
    poll1(a, "L_prb", 64, 8, 23, False)
    stamp(a, 12)
    def oloads(br):
        a("s_add_u32 s28, s22, 0x%x" % (WS_OB if br else WS_OA))
        for ks in range(20):
            a("buffer_load_dwordx4 %s, v4, s[12:15], s28 offen" % ar((0 if br else 80) + ks * 4), tag=("x", (0 if br else 20) + ks))
            a("s_add_u32 s28, s28, 1024")
    oloads(1)
    a("s_lshl_b32 s28, s20, 6")
    a("s_lshl_b32 s29, s27, 4")
    a("s_add_u32 s28, s28, s29")
    a("v_add_u32 v16, s28, v3")
    a("v_lshlrev_b32 v17, 2, v16")
    a("s_mov_b32 s29, 0x%x" % WS_G)
    a("buffer_load_dword v18, v17, s[12:15], s29 offen", tag="g")
    a("v_lshrrev_b32 v24, 2, v3")
    a("v_and_b32 v25, 3, v3")
    a("v_lshl_add_u32 v24, v2, 2, v24")
    a("v_mul_u32_u24 v24, 160, v24")
    a("v_lshl_add_u32 v20, v25, 3, v24")
    a("v_add_u32 v21, 61440, v20")
    a("v_add_u32 v22, 61440, v21")
    ACB = 96; ACA = 116
    a.wait_vm(("dma2", 0))
    a("s_barrier")
    p2_dma(a, 4)
    for r in p2_reads(0) + p2_reads(1): a(r)
    for kk in range(40):
        a("s_waitcnt lgkmcnt(%d)" % (10 if kk < 39 else 0))
        if kk == 12:
            stamp(a, 13)
            poll1(a, "L_pra", 128, 8, 23, False)
            oloads(0)
        a.wait_vm(("x", kk))
        nx = kk + 2
        rd = []
        if nx < 40:
            if nx % 4 == 0:
                un = nx // 4
                a.wait_vm(("dma2", un)); a("s_barrier")
                if un + 4 < 10:
                    p2_dma(a, un + 4)
            rd = p2_reads(nx)
        acc0 = ACB if kk < 20 else ACA
        mf = ["%s %s, %s, %s, %s" % (MF, vr(acc0 + t * 4), vr(24 + (kk % 3) * 20 + t * 4), ar(kk * 4), "0" if kk % 20 == 0 else vr(acc0 + t * 4)) for t in range(5)]
        interleave(a, mf, rd)
    stamp(a, 14)
    a.wait_vm("g")
    a("v_mul_u32_u24 v16, 1280, v16")
    a("v_lshl_add_u32 v16, v2, 3, v16")
    a("v_sub_f32 v19, 1.0, v18")
    a("v_cvt_pk_bf16_f32 v19, v19, v19")
    a("v_lshlrev_b32 v19, 16, v19")
    for t in range(5):
        A0 = ACA + t * 4; B0 = ACB + t * 4
        for X in (A0, B0):
            a("v_cvt_pk_bf16_f32 v28, v%d, v%d" % (X, X + 1))
            a("v_cvt_pk_bf16_f32 v29, v%d, v%d" % (X + 2, X + 3))
            a("v_lshlrev_b32 v%d, 16, v28" % X)
            a("v_and_b32 v%d, 0xffff0000, v28" % (X + 1))
            a("v_lshlrev_b32 v%d, 16, v29" % (X + 2))
            a("v_and_b32 v%d, 0xffff0000, v29" % (X + 3))
            mul = 18 if X == A0 else 19
            for r in range(4):
                a("v_mul_f32 v%d, v%d, v%d" % (X + r, X + r, mul))
            a("v_cvt_pk_bf16_f32 v28, v%d, v%d" % (X, X + 1))
            a("v_cvt_pk_bf16_f32 v29, v%d, v%d" % (X + 2, X + 3))
            a("v_lshlrev_b32 v%d, 16, v28" % X)
            a("v_and_b32 v%d, 0xffff0000, v28" % (X + 1))
            a("v_lshlrev_b32 v%d, 16, v29" % (X + 2))
            a("v_and_b32 v%d, 0xffff0000, v29" % (X + 3))
        for r in range(4):
            a("v_add_f32 v%d, v%d, v%d" % (A0 + r, A0 + r, B0 + r))
        a("v_cvt_pk_bf16_f32 v%d, v%d, v%d" % (B0, A0, A0 + 1))
        a("v_cvt_pk_bf16_f32 v%d, v%d, v%d" % (B0 + 1, A0 + 2, A0 + 3))
        a("buffer_store_dwordx2 %s, v16, s[32:35], s23 offen offset:%d" % (vr(B0, 2), t * 32))
    stamp(a, 15)
    a.label("L_k1_end")
    a("s_endpgm")

HEADER = open("cdna_kernels/%s.s.ref" % NAME).read().split("; Override launch")[0]

def main(path):
    a = Asm()
    a.raw(HEADER.rstrip())
    a.raw("; @launch grid=(256,1,1) block=(256,1,1) lds=163840")
    a.raw('.amdgcn_target "amdgcn-amd-amdhsa--gfx950"\n.text')
    gen_k1(a)
    gen_k2(a)
    a.raw('.section .rodata,"a"')
    for k in (KN,):
        a.raw(""".p2align 6
.amdhsa_kernel %s
  .amdhsa_next_free_vgpr 512
  .amdhsa_next_free_sgpr 102
  .amdhsa_accum_offset 256
  .amdhsa_group_segment_fixed_size 0
  .amdhsa_kernarg_size 88
  .amdhsa_user_sgpr_count 2
  .amdhsa_user_sgpr_kernarg_segment_ptr 1
  .amdhsa_system_sgpr_workgroup_id_x 1
.end_amdhsa_kernel""" % k)
    open(path, "w").write(a.text())
    print("instructions:", a.n_ins)

if __name__ == "__main__":
    if len(sys.argv) > 2 and sys.argv[2] == "stamps":
        STAMPS = True
    main(sys.argv[1] if len(sys.argv) > 1 else "cdna_kernels/%s.s" % NAME)
```

```python
import sys
sys.path.insert(0, "tools")
from emit import Asm

NAME = "gated_mix__linear_kernel_hedgehog__sliding_local_dilated__prompt"
KN = NAME + "_kernel"
WS_KVT = 0
WS_G = 0x20000
WS_OA = 0x40000
WS_OB = 0x40000 + 0x280000
L2E = 0x3fb8aa3b
SCALE = 0x3e64f92e
MF = "v_mfma_f32_16x16x32_bf16"

NB1 = 5
XR = NB1 * 20480
SMALL = XR + 49152
WPHI = SMALL
ZR = SMALL + 3328
KVB = 0
VFR = 81920
PHI = 102400
PHI_STRIDE = 352
HALO = 81920
EXC = 81920 + 30720

STAMPS = False
WS_ST = 0x800000
def stamp(a, n, kern=0):
    if not STAMPS: return
    a("s_memtime s[90:91]")
    a("s_waitcnt lgkmcnt(0)")
    a("v_accvgpr_write_b32 a200, s90")
    a("s_lshl_b32 s92, s2, 2")
    a("s_add_u32 s92, s92, s27")
    a("s_lshl_b32 s92, s92, 8")
    a("s_add_u32 s92, s92, 0x%x" % (WS_ST + kern * 0x20000 + n * 4))
    a("buffer_store_dword a200, off, s[12:15], s92")
    a("s_memrealtime s[90:91]")
    a("s_waitcnt lgkmcnt(0)")
    a("v_accvgpr_write_b32 a201, s90")
    a("buffer_store_dword a201, off, s[12:15], s92 offset:64")
    if n == 0:
        a("v_accvgpr_write_b32 a202, s94")
        a("buffer_store_dword a202, off, s[12:15], s92 offset:128")


def vr(b, n=4):
    return "v[%d:%d]" % (b, b + n - 1)
def ar(b, n=4):
    return "a[%d:%d]" % (b, b + n - 1)

def srd(a, d, lo, hi, size):
    a("s_mov_b32 s%d, s%d" % (d, lo))
    a("s_mov_b32 s%d, s%d" % (d + 1, hi))
    a("s_mov_b32 s%d, 0x%x" % (d + 2, size))
    a("s_mov_b32 s%d, 0x00020000" % (d + 3))

def load_kernargs(a):
    a("s_load_dwordx16 s[64:79], s[0:1], 0")
    a("s_load_dwordx4 s[80:83], s[0:1], 64")
    a("s_load_dwordx2 s[84:85], s[0:1], 80")

def dma_row_decode(a, vdst_p, vdst_cc, i5, vt):
    a("v_add_u32 v%d, %d, v1" % (vt, i5 * 64))
    a("v_mul_u32_u24 v%d, 0x199a, v%d" % (vdst_p, vt))
    a("v_lshrrev_b32 v%d, 16, v%d" % (vdst_p, vdst_p))
    a("v_mul_u32_u24 v%d, 10, v%d" % (vdst_cc, vdst_p))
    a("v_sub_u32 v%d, v%d, v%d" % (vdst_cc, vt, vdst_cc))

def poll(a, name, off, target, vt=15):
    a("s_mov_b32 s29, 0x20000")
    a.label(name)
    a("buffer_load_dword v%d, off, s[16:19], s30 offset:%d sc1" % (vt, off))
    a.wait_vm_all()
    a("v_readfirstlane_b32 s28, v%d" % vt)
    a("s_cmp_ge_u32 s28, %d" % target)
    a("s_cbranch_scc1 %s_done" % name)
    a("s_sleep 4")
    a("s_sub_u32 s29, s29, 1")
    a("s_cmp_lg_u32 s29, 0")
    a("s_cbranch_scc1 %s" % name)
    a.label(name + "_done")

def poll1(a, name, off, target, vt=15, inv=False):
    keep = list(a.vm)
    a("s_cmp_lg_u32 s27, 0")
    a("s_cbranch_scc1 %s_w" % name)
    poll(a, name, off, target, vt)
    a.vm = keep
    a.label(name + "_w")
    a("s_barrier")
    if inv:
        a("buffer_inv sc1")

def signal(a, name, off):
    a("s_cmp_lg_u32 s27, 0")
    a("s_cbranch_scc1 %s" % name)
    a("v_mov_b32 v14, 1")
    a("s_lshl_b32 s28, s21, 2")
    a("s_mov_b64 exec, 1")
    a("buffer_atomic_add v14, off, s[16:19], s28 offset:%d" % off)
    a.vm.pop()
    a("s_mov_b64 exec, -1")
    a.label(name)

def interleave(a, mf, rd, rate=2):
    k = 0; m = len(rd)
    for i, x in enumerate(mf):
        a(x)
        for _ in range(rate):
            if k < m:
                a(rd[k]); k += 1
    while k < m:
        a(rd[k]); k += 1

SEQ = [("P", u) for u in range(10)] + [("Q", u) for u in range(5)]
def ubuf(n):
    return n % 5 if n < 10 else (n - 10) % 4
STEPS = []
for n, (kind, u) in enumerate(SEQ):
    if kind == "P":
        for s in range(2): STEPS.append((n, "P", 2 * u + s, s))
    else:
        for s in range(4): STEPS.append((n, "Q", 4 * u + s, s))
KA = 96; VA = 136; QA = 96; HA = 216; WFA = 180
XP2 = 1; XA0 = 14

def k1_dma(a, n, st="s28"):
    kind, u = SEQ[n]
    buf = ubuf(n)
    if kind == "P":
        a("s_add_u32 %s, s86, %d" % (st, u))
        a("s_cmp_ge_u32 %s, 10" % st)
        a("s_cselect_b32 s101, 10, 0")
        a("s_sub_u32 %s, %s, s101" % (st, st))
        a("s_mul_i32 %s, %s, 245760" % (st, st))
        a("s_add_u32 %s, %s, s24" % (st, st))
    else:
        a("s_add_u32 %s, s87, %d" % (st, 4 * u))
        a("s_cmp_ge_u32 %s, 20" % st)
        a("s_cselect_b32 s101, 20, 0")
        a("s_sub_u32 %s, %s, s101" % (st, st))
        a("s_mul_i32 %s, %s, 122880" % (st, st))
        a("s_add_u32 %s, %s, s25" % (st, st))
    for i5 in range(5):
        a("s_add_u32 m0, s26, %d" % (buf * 20480 + i5 * 1024))
        a("buffer_load_dwordx4 v%d, s[8:11], %s offen lds" % (5 + i5, st), tag=("dma", n))

def q_groups(a, br):
    G = []
    G.append([(lambda: a.wait_vm(("dma", 10)), None), ("s_barrier", None)])
    rr = k1_reads(20, br) + k1_reads(21, br)
    for i in range(0, len(rr), 4):
        G.append([(r, None) for r in rr[i:i + 4]])
    for si in range(20, 40):
        g = [("s_waitcnt lgkmcnt(%d)" % (10 if si < 39 else 0), None)]
        rd = []
        if si + 2 < 40:
            n2 = STEPS[si + 2][0]
            if n2 != STEPS[si + 1][0]:
                g.append(((lambda n2=n2: a.wait_vm(("dma", n2))), None))
                g.append(("s_barrier", None))
                if n2 == 12:
                    g.append(((lambda: k1_dma(a, 14, "s100")), None))
            rd = k1_reads(si + 2, br)
        mf = k1_mfmas(si, br)
        k = 0
        for x in mf:
            g.append((x, None))
            for _ in range(2):
                if k < len(rd):
                    g.append((rd[k], None)); k += 1
            G.append(g); g = []
    return G

def tr_base(img, blk):
    grp = img // 61440
    return (12 if blk else 10) + grp, img - grp * 61440

def fset(si, br=1):
    if STEPS[si][1] == "P":
        return 16 + (si & 1) * 40
    return (16, 36, 56)[si % 3] if br == 1 else (216, 236, 76)[si % 3]
def qacc(br):
    return 96 if br == 1 else 176

def k1_reads(si, br):
    n, kind, ks, sub = STEPS[si]
    buf = ubuf(n)
    fs = fset(si, br)
    out = []
    nt = 10 if kind == "P" else 5
    for j in range(nt):
        t = j % 5
        if kind == "P":
            seg = j // 5
            img = buf * 20480 + (sub * 2 + seg) * 5120
            blk = (seg == 0 and br == 0)
        else:
            img = buf * 20480 + sub * 5120
            blk = (br == 0)
        base, off = tr_base(img, blk)
        co = 8 * t if blk else 32 * t
        for h in range(2):
            out.append("ds_read_b64_tr_b16 %s, v%d offset:%d" % (vr(fs + j * 4 + 2 * h, 2), base, off + h * 2560 + co))
    return out

def k1_mfmas(si, br=1):
    n, kind, ks, sub = STEPS[si]
    fs = fset(si, br)
    out = []
    nt = 10 if kind == "P" else 5
    for j in range(nt):
        t = j % 5
        f = vr(fs + j * 4)
        for P in range(2):
            x = ar((ks * 2 + P) * 4)
            if kind == "Q":
                acc = vr(qacc(br) + (P * 5 + t) * 4)
                out.append("%s %s, %s, %s, %s" % (MF, acc, f, x, "0" if ks == 0 else acc))
            elif j < 5:
                acc = vr(KA + (P * 5 + t) * 4)
                out.append("%s %s, %s, %s, %s" % (MF, acc, f, x, "0" if ks == 0 else acc))
            else:
                acc = vr(VA + (P * 5 + t) * 4)
                out.append("%s %s, %s, %s, %s" % (MF, acc, x, f, "0" if ks == 0 else acc))
    return out

UPRE = 4

def xdma(a, c):
    a("s_add_u32 s29, s86, %d" % c)
    a("s_cmp_ge_u32 s29, 10")
    a("s_cselect_b32 s101, 10, 0")
    a("s_sub_u32 s29, s29, s101")
    a("s_lshl_b32 s29, s29, 7")
    for j in range(4):
        a("s_add_u32 m0, s23, %d" % ((c % 3) * 4096 + j * 1024))
        a("s_add_u32 s28, s29, %d" % (j * 10240))
        a("buffer_load_dwordx4 v%d, s[4:7], s28 offen lds" % (4 if j % 2 == 0 else XP2), tag=("xc", c))

def xreads(c):
    out = []
    for p in range(2):
        for P in range(2):
            out.append("ds_read_b128 %s, v%d offset:%d" % (ar(((2 * c + p) * 2 + P) * 4), XA0 + p, (c % 3) * 4096 + P * 2048))
    return out

def wo_prefetch(a):
    a("s_lshr_b32 s28, s2, 3")
    a("s_cmp_lt_u32 s28, 16")
    a("s_cselect_b32 s96, s70, s76")
    a("s_cselect_b32 s97, s71, s77")
    a("s_mov_b32 s98, 819200")
    a("s_mov_b32 s99, 0x00020000")
    a("s_and_b32 s28, s28, 15")
    a("s_mul_i32 s28, s28, 40")
    a("s_mul_i32 s29, s27, 10")
    a("s_add_u32 s28, s28, s29")
    a("s_mul_i32 s28, s28, 1280")
    a("s_and_b32 s29, s2, 1")
    a("s_mul_i32 s29, s29, 640")
    a("s_add_u32 s28, s28, s29")
    a("v_lshlrev_b32 v14, 4, v1")
    a("s_mov_b32 s100, -1")
    a("s_mov_b32 s101, 0xff")
    a("s_mov_b64 exec, s[100:101]")
    for r in range(10):
        a("buffer_load_dwordx4 a[240:243], v14, s[96:99], s28 offen", tag="pf")
        a("s_add_u32 s28, s28, 1280")
    a("s_mov_b64 exec, -1")

def k1_gemm(a, br, phase, first_hook=None):
    if phase == 0:
        a("v_lshrrev_b32 v16, 1, v3")
        a("v_xor_b32 v16, v16, v2")
        a("v_lshlrev_b32 v17, 7, v3")
        a("v_add_u32 v17, s23, v17")
        a("v_lshl_add_u32 v14, v16, 4, v17")
        a("v_xor_b32 v15, 64, v14")
        a("v_xor_b32 v1, 64, v4")
        a.wait_vm(("xc", 0))
        for r in xreads(0):
            a(r)
        a.wait_vm(("dma", 0), "lgkmcnt(0)")
        a("s_barrier")
        xdma(a, 3)
        if first_hook: first_hook()
        lo, hi = 0, 20
    else:
        a.wait_vm(("dma", 10))
        a("s_barrier")
        for r in k1_reads(20, br) + k1_reads(21, br):
            a(r)
        for si in range(20, 40):
            n = STEPS[si][0]
            a("s_waitcnt lgkmcnt(%d)" % (10 if si < 39 else 0))
            rd = []
            if si + 2 < 40:
                n2 = STEPS[si + 2][0]
                if n2 != STEPS[si + 1][0]:
                    a.wait_vm(("dma", n2))
                    a("s_barrier")
                    if n2 == 12:
                        k1_dma(a, 14)
                rd = k1_reads(si + 2, br)
            interleave(a, k1_mfmas(si), rd)
        return
    for r in k1_reads(lo, br):
        a(r)
    pend_x = None
    for si in range(lo, hi):
        n, kind, ks, sub = STEPS[si]
        a("s_waitcnt lgkmcnt(0)")
        if pend_x is not None:
            if pend_x + 3 < 10:
                xdma(a, pend_x + 3)
            pend_x = None
        rd = []
        if si + 1 < hi:
            n2, kind2, ks2, _ = STEPS[si + 1]
            if kind2 == "P" and ks2 % 2 == 0:
                a.wait_vm(("xc", ks2 // 2))
                rd += xreads(ks2 // 2)
                pend_x = ks2 // 2
            if n2 != n:
                a.wait_vm(("dma", n2))
                a("s_barrier")
                if n2 <= 9:
                    k1_dma(a, n2 + 3)
                elif n2 == 11:
                    k1_dma(a, 14)
            rd += k1_reads(si + 1, br)
        interleave(a, k1_mfmas(si), rd)
        if kind == "P" and br == 1:
            a("s_cmp_eq_u32 s27, %d" % (ks & 3))
            a("s_cbranch_scc0 L_h%d" % ks)
            a.wait_vm(("xh", ks >> 2))
            fs = 16 + (si & 1) * 40
            for j in range(10):
                f = vr(fs + j * 4)
                x = ar(160 + (ks >> 2) * 4)
                acc = vr(HA + j * 4)
                if j < 5:
                    a("%s %s, %s, %s, %s" % (MF, acc, f, x, acc))
                else:
                    a("%s %s, %s, %s, %s" % (MF, acc, x, f, acc))
            a.label("L_h%d" % ks)
    if phase == 0:
        a("s_barrier")
        k1_dma(a, 13)
        a("v_and_b32 v1, 63, v0")
        wo_prefetch(a)

def load_wphi_frags(a):
    for tp in range(5):
        for c in range(3):
            f = WFA + (tp * 3 + c) * 4
            a("ds_read_b64_tr_b16 %s, v14 offset:%d" % (ar(f, 2), (8 * c) * 40 + 8 * tp))
            if c < 2:
                a("ds_read_b64_tr_b16 %s, v14 offset:%d" % (ar(f + 2, 2), (8 * c + 4) * 40 + 8 * tp))
            else:
                a("v_accvgpr_write_b32 a%d, 0" % (f + 2))
                a("v_accvgpr_write_b32 a%d, 0" % (f + 3))

def phi_stage(a, acc, out, T):
    kp = T; pk = T + 12; em = T + 32; tmp = T + 52
    for t in range(5):
        a("v_cvt_pk_bf16_f32 v%d, v%d, v%d" % (kp + 2 * t, acc + 4 * t, acc + 4 * t + 1))
        a("v_cvt_pk_bf16_f32 v%d, v%d, v%d" % (kp + 2 * t + 1, acc + 4 * t + 2, acc + 4 * t + 3))
    a("v_mov_b32 v%d, 0" % (kp + 10))
    a("v_mov_b32 v%d, 0" % (kp + 11))
    for c in range(3):
        for tp in range(5):
            d = vr(pk + 4 * tp)
            a("%s %s, %s, %s, %s" % (MF, d, ar(WFA + (tp * 3 + c) * 4), vr(kp + 4 * c), "0" if c == 0 else d))
    for m in range(10):
        a("v_cvt_pk_bf16_f32 v%d, v%d, v%d" % (kp + m, pk + 2 * m, pk + 2 * m + 1))
    for m in range(10):
        a("v_lshlrev_b32 v%d, 16, v%d" % (pk + 2 * m, kp + m))
        a("v_and_b32 v%d, 0xffff0000, v%d" % (pk + 2 * m + 1, kp + m))
    mx = tmp; mn = tmp + 1; s1 = tmp + 2; s2 = tmp + 3
    a("v_max3_f32 v%d, v%d, v%d, v%d" % (mx, pk, pk + 1, pk + 2))
    a("v_min3_f32 v%d, v%d, v%d, v%d" % (mn, pk, pk + 1, pk + 2))
    for m in range(3, 19, 2):
        a("v_max3_f32 v%d, v%d, v%d, v%d" % (mx, mx, pk + m, pk + m + 1))
        a("v_min3_f32 v%d, v%d, v%d, v%d" % (mn, mn, pk + m, pk + m + 1))
    a("v_max_f32 v%d, v%d, v%d" % (mx, mx, pk + 19))
    a("v_min_f32 v%d, v%d, v%d" % (mn, mn, pk + 19))
    a("v_mul_f32 v%d, s31, v%d" % (mx, mx))
    a("v_mul_f32 v%d, s31, v%d" % (mn, mn))
    a("v_mov_b32 v%d, v%d" % (tmp + 5, mx))
    a("v_mov_b32 v%d, v%d" % (tmp + 4, mx))
    a("v_mov_b32 v%d, v%d" % (tmp + 7, mn))
    a("v_mov_b32 v%d, v%d" % (tmp + 6, mn))
    for m in range(10):
        a("v_pk_fma_f32 %s, %s, s[62:63], %s neg_lo:[1,0,0] neg_hi:[1,0,0]" % (vr(em + 2 * m, 2), vr(pk + 2 * m, 2), vr(tmp + 6, 2)))
        a("v_pk_fma_f32 %s, %s, s[62:63], %s neg_lo:[0,0,1] neg_hi:[0,0,1]" % (vr(pk + 2 * m, 2), vr(pk + 2 * m, 2), vr(tmp + 4, 2)))
    for m in range(20):
        a("v_exp_f32 v%d, v%d" % (pk + m, pk + m))
        a("v_exp_f32 v%d, v%d" % (em + m, em + m))
    a("v_pk_add_f32 %s, %s, %s" % (vr(tmp + 4, 2), vr(pk, 2), vr(pk + 2, 2)))
    a("v_pk_add_f32 %s, %s, %s" % (vr(tmp + 6, 2), vr(em, 2), vr(em + 2, 2)))
    for m in range(2, 10):
        a("v_pk_add_f32 %s, %s, %s" % (vr(tmp + 4, 2), vr(tmp + 4, 2), vr(pk + 2 * m, 2)))
        a("v_pk_add_f32 %s, %s, %s" % (vr(tmp + 6, 2), vr(tmp + 6, 2), vr(em + 2 * m, 2)))
    a("v_add_f32 v%d, v%d, v%d" % (s1, tmp + 4, tmp + 5))
    a("v_add_f32 v%d, v%d, v%d" % (s2, tmp + 6, tmp + 7))
    a("v_rcp_f32 v%d, v%d" % (tmp + 4, s1))
    a("v_rcp_f32 v%d, v%d" % (tmp + 6, s2))
    a("v_mov_b32 v%d, v%d" % (tmp + 5, tmp + 4))
    a("v_mov_b32 v%d, v%d" % (tmp + 7, tmp + 6))
    for m in range(10):
        a("v_pk_mul_f32 %s, %s, %s" % (vr(pk + 2 * m, 2), vr(pk + 2 * m, 2), vr(tmp + 4, 2)))
        a("v_pk_mul_f32 %s, %s, %s" % (vr(em + 2 * m, 2), vr(em + 2 * m, 2), vr(tmp + 6, 2)))
    for m in range(10):
        a("v_cvt_pk_bf16_f32 v%d, v%d, v%d" % (out + m, pk + 2 * m, pk + 2 * m + 1))
        a("v_cvt_pk_bf16_f32 v%d, v%d, v%d" % (out + 10 + m, em + 2 * m, em + 2 * m + 1))

def store_frag(a, op, P):
    a("buffer_store_dwordx4 %s, v15, s[12:15], s22 offen offset:%d sc0 sc1" % (vr(op), 0), tag="st")
    a("buffer_store_dwordx4 %s, v15, s[12:15], s22 offen offset:%d sc0 sc1" % (vr(op + 4), 1024), tag="st")
    a("buffer_store_dwordx2 %s, v15, s[12:15], s23 offen sc0 sc1" % (vr(op + 8, 2)), tag="st")
    if P == 0:
        a("s_add_u32 s22, s22, 20480")
        a("s_add_u32 s23, s23, 20480")

def frag_store_setup(a, wsoff):
    a("s_lshl_b32 s22, s20, 3")
    a("s_lshl_b32 s28, s27, 1")
    a("s_add_u32 s22, s22, s28")
    a("s_mul_i32 s22, s22, 20480")
    a("s_add_u32 s22, s22, 0x%x" % wsoff)
    a("s_lshr_b32 s28, s21, 1")
    a("s_mul_i32 s28, s28, 5120")
    a("s_add_u32 s22, s22, s28")
    a("s_add_u32 s23, s22, 2048")
    a("s_and_b32 s28, s21, 1")
    a("s_mul_i32 s29, s28, 3072")
    a("s_add_u32 s22, s22, s29")
    a("s_lshl_b32 s28, s28, 3")
    a("s_add_u32 s23, s23, s28")
    a("v_lshlrev_b32 v15, 4, v1")

def gen_k1(a):
    a.raw(".globl %s\n.p2align 8\n.type %s,@function\n%s:" % (KN, KN, KN))
    a("s_cmp_ge_u32 s2, 256")
    a("s_cbranch_scc1 L_k1_end")
    if STAMPS: a("s_memrealtime s[94:95]")
    load_kernargs(a)
    a("s_and_b32 s28, s2, 7")
    a("s_lshr_b32 s29, s2, 3")
    a("s_lshr_b32 s20, s28, 2")
    a("s_lshl_b32 s20, s20, 3")
    a("s_lshr_b32 s30, s29, 2")
    a("s_add_u32 s20, s20, s30")
    a("s_and_b32 s21, s28, 3")
    a("s_lshl_b32 s21, s21, 2")
    a("s_and_b32 s30, s29, 3")
    a("s_add_u32 s21, s21, s30")
    a("s_lshr_b32 s3, s21, 3")
    a("s_and_b32 s21, s21, 7")
    a("v_and_b32 v1, 63, v0")
    a("v_lshrrev_b32 v2, 6, v0")
    a("v_readfirstlane_b32 s27, v2")
    a("v_lshrrev_b32 v2, 4, v1")
    a("v_and_b32 v3, 15, v1")
    a("s_lshl_b32 s28, s20, 7")
    a("s_lshl_b32 s29, s27, 5")
    a("s_add_u32 s28, s28, s29")
    a("v_lshrrev_b32 v14, 3, v1")
    a("v_add_u32 v4, s28, v14")
    a("v_mul_u32_u24 v4, 1280, v4")
    a("v_lshrrev_b32 v14, 1, v14")
    a("v_and_b32 v15, 7, v1")
    a("v_xor_b32 v14, v14, v15")
    a("v_lshl_add_u32 v4, v14, 4, v4")
    a("s_lshr_b32 s28, s27, 1")
    a("s_mul_i32 s24, s28, 122880")
    a("s_and_b32 s28, s27, 1")
    a("s_add_u32 s28, s28, 1")
    a("s_mul_i32 s28, s28, 1280")
    a("s_add_u32 s24, s24, s28")
    a("s_mul_i32 s28, s21, 160")
    a("s_add_u32 s24, s24, s28")
    a("s_mov_b32 s25, s28")
    a("s_lshr_b32 s29, s2, 3")
    a("s_lshr_b32 s86, s29, 2")
    a("s_and_b32 s29, s29, 3")
    a("s_lshl_b32 s29, s29, 1")
    a("s_add_u32 s86, s86, s29")
    a("s_cmp_ge_u32 s86, 10")
    a("s_cselect_b32 s29, 10, 0")
    a("s_sub_u32 s86, s86, s29")
    a("s_lshl_b32 s87, s86, 1")
    a("s_add_u32 s87, s87, s27")
    a("s_cmp_ge_u32 s87, 20")
    a("s_cselect_b32 s29, 20, 0")
    a("s_sub_u32 s87, s87, s29")
    a("s_mul_i32 s26, s27, 5120")
    for i5 in range(5):
        dma_row_decode(a, 14, 15, i5, 16)
        a("v_lshrrev_b32 v16, 4, v14")
        a("v_bfe_u32 v17, v14, 2, 2")
        a("v_and_b32 v18, 3, v14")
        a("v_lshlrev_b32 v17, 3, v17")
        a("v_lshl_add_u32 v17, v16, 2, v17")
        a("v_add_u32 v17, v17, v18")
        a("v_mul_u32_u24 v17, 3840, v17")
        a("v_lshl_add_u32 v%d, v15, 4, v17" % (5 + i5))
    a("s_mul_i32 s23, s27, 12288")
    a("s_add_u32 s23, s23, %d" % XR)
    a("v_xor_b32 v240, 64, v4")
    a("s_waitcnt lgkmcnt(0)")
    srd(a, 4, 64, 65, 2621440)
    a("s_cmp_eq_u32 s3, 0")
    a("s_cselect_b32 s8, s66, s74")
    a("s_cselect_b32 s9, s67, s75")
    a("s_mov_b32 s10, 2457600")
    a("s_mov_b32 s11, 0x00020000")
    srd(a, 12, 84, 85, 0x10000000)
    srd(a, 16, 82, 83, 256)
    a("s_or_b32 s28, s3, s27")
    a("s_cmp_lg_u32 s28, 0")
    a("s_cbranch_scc1 L_nz")
    a("v_mov_b32 v16, 0"); a("v_mov_b32 v17, 0"); a("v_mov_b32 v18, 0"); a("v_mov_b32 v19, 0")
    a("v_lshlrev_b32 v15, 4, v1")
    a("s_lshl_b32 s28, s21, 14")
    a("s_lshl_b32 s29, s20, 10")
    a("s_add_u32 s28, s28, s29")
    a("buffer_store_dwordx4 v[16:19], v15, s[12:15], s28 offen sc0 sc1")
    a.vm.pop()
    a.label("L_nz")
    a("v_mov_b32 v241, v1")
    a("v_mov_b32 v1, v240")
    xdma(a, 0)
    k1_dma(a, 0)
    xdma(a, 1)
    k1_dma(a, 1)
    xdma(a, 2)
    k1_dma(a, 2)
    k1_dma(a, 3)
    a("v_mov_b32 v1, v241")
    stamp(a, 0)
    a("v_lshrrev_b32 v16, 2, v3")
    a("v_and_b32 v17, 3, v3")
    a("v_lshl_add_u32 v16, v2, 2, v16")
    a("v_mul_u32_u24 v16, 160, v16")
    a("v_lshl_add_u32 v10, v17, 3, v16")
    a("v_add_u32 v11, 61440, v10")
    a("v_mul_u32_u24 v17, 40, v17")
    a("v_add_u32 v12, v16, v17")
    a("v_add_u32 v13, 61440, v12")
    a("s_mov_b32 s31, 0x%x" % L2E)
    a("s_mov_b32 s62, s31")
    a("s_mov_b32 s63, s31")
    a("s_cmp_eq_u32 s3, 0")
    a("s_cbranch_scc0 L_k1_B")
    vm_snapshot = list(a.vm)

    srd(a, 32, 68, 69, 25600)
    a("s_mul_i32 s28, s21, 3200")
    a("v_lshlrev_b32 v15, 4, v0")
    a("buffer_load_dwordx4 v[16:19], v15, s[32:35], s28 offen", tag="wphi")
    a("v_mov_b32 v20, 0"); a("v_mov_b32 v21, 0"); a("v_mov_b32 v22, 0"); a("v_mov_b32 v23, 0")
    a("v_add_u32 v24, %d, v15" % ZR)
    a("v_cmp_gt_u32 vcc, 128, v0")
    a("s_and_saveexec_b64 s[28:29], vcc")
    a("ds_write_b128 v24, v[20:23]")
    a("s_mov_b64 exec, s[28:29]")
    a.wait_vm("wphi")
    a("v_add_u32 v24, %d, v15" % WPHI)
    a("v_cmp_gt_u32 vcc, 200, v0")
    a("s_and_saveexec_b64 s[28:29], vcc")
    a("ds_write_b128 v24, v[16:19]")
    a("s_mov_b64 exec, s[28:29]")
    stamp(a, 1)
    def hookZ():
        a("v_mov_b32 v16, v14")
        signal(a, "L_sz", 0)
        a("v_mov_b32 v14, v16")
    k1_gemm(a, 0, 0, hookZ)
    stamp(a, 2)
    a("s_lshl_b32 s30, s21, 2")
    a("buffer_load_dword a250, off, s[16:19], s30 sc1", tag="zf")
    a("v_lshrrev_b32 v16, 2, v3")
    a("v_and_b32 v17, 3, v3")
    a("v_mul_u32_u24 v18, 800, v2")
    a("v_mul_u32_u24 v16, 40, v16")
    a("v_add_u32 v18, v18, v16")
    a("v_add_u32 v18, %d, v18" % WPHI)
    a("v_mov_b32 v19, %d" % ZR)
    a("v_cmp_eq_u32 vcc, v17, v2")
    a("v_cndmask_b32 v14, v19, v18, vcc")
    load_wphi_frags(a)
    a("v_lshlrev_b32 v15, 4, v1")
    a("s_mul_i32 s28, s27, 5120")
    a("s_add_u32 s28, s28, %d" % VFR)
    a("v_add_u32 v15, s28, v15")
    for t in range(5):
        for P in range(2):
            b = VA + (P * 5 + t) * 4
            a("v_cvt_pk_bf16_f32 v%d, v%d, v%d" % (16 + t * 4 + 2 * P, b, b + 1))
            a("v_cvt_pk_bf16_f32 v%d, v%d, v%d" % (16 + t * 4 + 2 * P + 1, b + 2, b + 3))
        a("ds_write_b128 v15, %s offset:%d" % (vr(16 + t * 4), t * 1024))
    a("s_waitcnt lgkmcnt(0)")
    a("s_lshl_b32 s28, s27, 5")
    a("v_add_u32 v15, s28, v3")
    a("v_mul_u32_u24 v15, %d, v15" % PHI_STRIDE)
    a("v_mul_u32_u24 v16, 80, v2")
    a("v_add_u32 v15, v15, v16")
    a("v_add_u32 v15, %d, v15" % PHI)
    for P in range(2):
        phi_stage(a, KA + P * 20, 136 + P * 20, 16)
        for c in range(5):
            a("ds_write_b128 v15, %s offset:%d" % (vr(136 + P * 20 + 4 * c), P * 16 * PHI_STRIDE + 16 * c))
    a("s_waitcnt lgkmcnt(0)")
    a("s_barrier")
    stamp(a, 3)
    a("v_lshrrev_b32 v16, 2, v3")
    a("v_and_b32 v17, 3, v3")
    a("v_lshl_add_u32 v16, v2, 2, v16")
    a("v_mul_u32_u24 v16, %d, v16" % PHI_STRIDE)
    a("v_lshl_add_u32 v16, v17, 3, v16")
    a("s_mul_i32 s28, s27, 80")
    a("s_add_u32 s28, s28, %d" % PHI)
    a("v_add_u32 v16, s28, v16")
    a("v_lshlrev_b32 v17, 4, v1")
    a("s_lshl_b32 s28, s27, 10")
    a("s_add_u32 s28, s28, %d" % VFR)
    a("v_add_u32 v17, s28, v17")
    for q in range(4):
        a("v_mov_b32 v%d, 0x3f803f80" % (20 + q))
    KVA = 96
    for s4 in range(4):
        pf = 24 + (s4 & 1) * 20
        for ft in range(3):
            for h in range(2):
                a("ds_read_b64_tr_b16 %s, v16 offset:%d" % (vr(pf + ft * 4 + 2 * h, 2), (s4 * 32 + h * 16) * PHI_STRIDE + 32 * ft))
        for tt in range(2):
            a("ds_read_b128 %s, v17 offset:%d" % (vr(pf + 12 + tt * 4), s4 * 5120 + tt * 1024))
        a("s_waitcnt lgkmcnt(0)")
        for ft in range(3):
            for tt in range(3):
                d = vr(KVA + (ft * 3 + tt) * 4)
                A_ = vr(pf + 12 + tt * 4) if tt < 2 else vr(20)
                a("%s %s, %s, %s, %s" % (MF, d, A_, vr(pf + ft * 4), "0" if s4 == 0 else d))
    a.bg_off()
    stamp(a, 4)
    a.wait_vm("zf")
    a("v_accvgpr_read_b32 v15, a250")
    a("v_readfirstlane_b32 s28, v15")
    a("s_cmp_ge_u32 s28, 16")
    a("s_cbranch_scc1 L_pz_ok")
    keep = list(a.vm)
    poll(a, "L_pz", 0, 16)
    a.vm = keep
    a.label("L_pz_ok")
    a("v_mul_u32_u24 v15, 640, v2")
    a("v_lshl_add_u32 v15, v3, 2, v15")
    a("s_lshl_b32 s28, s21, 14")
    a("s_mul_i32 s29, s27, 2720")
    a("s_add_u32 s28, s28, s29")
    a("v_cmp_ge_u32 s[32:33], v2, s27")
    a("v_cmp_le_u32 s[34:35], v2, s27")
    a("v_cmp_gt_u32 s[36:37], 8, v3")
    a("s_and_b64 s[38:39], s[32:33], s[36:37]")
    a("s_and_b64 s[40:41], s[34:35], s[36:37]")
    for tt in range(2):
        for ft in range(3):
            msk = (32 if tt == 0 else 34) if ft < 2 else (38 if tt == 0 else 40)
            a("s_mov_b64 exec, s[%d:%d]" % (msk, msk + 1))
            for r in range(4):
                a("buffer_atomic_add_f32 v%d, v15, s[12:15], s28 offen offset:%d" %
                  (KVA + (ft * 3 + tt) * 4 + r, tt * 2560 + r * 160 + ft * 64), tag="atom")
    a("s_lshl_b32 s28, s21, 14")
    a("s_mul_i32 s29, s27, 3360")
    a("s_add_u32 s28, s28, s29")
    for ft in range(3):
        a("s_mov_b64 exec, 0x%x" % (0xffff if ft < 2 else 0xff))
        a("buffer_atomic_add_f32 v%d, v15, s[12:15], s28 offen offset:%d" % (KVA + (ft * 3 + 2) * 4, 3200 + ft * 64), tag="atom")
    a("s_mov_b64 exec, -1")
    stamp(a, 5)
    PQ = 136
    a.bg = q_groups(a, 0)
    a.bg_flush()
    a.wait_vm("atom")
    a("s_barrier")
    signal(a, "L_sc", 32)
    stamp(a, 6)
    phi_stage(a, 176, PQ, 16)
    phi_stage(a, 196, PQ + 20, 16)
    stamp(a, 7)
    a("s_lshl_b32 s30, s21, 2")
    poll1(a, "L_pc", 32, 16)
    stamp(a, 8)
    a("v_lshlrev_b32 v15, 4, v0")
    a("s_lshl_b32 s28, s21, 14")
    for q in range(4):
        a("buffer_load_dwordx4 %s, v15, s[12:15], s28 offen sc1" % vr(16 + 4 * q), tag="kv")
        a("s_add_u32 s28, s28, 4096")
    a("v_lshlrev_b32 v15, 3, v0")
    a("v_add_u32 v15, %d, v15" % KVB)
    a.wait_vm("kv")
    for q in range(4):
        a("v_cvt_pk_bf16_f32 v%d, v%d, v%d" % (32 + 2 * q, 16 + 4 * q, 17 + 4 * q))
        a("v_cvt_pk_bf16_f32 v%d, v%d, v%d" % (33 + 2 * q, 18 + 4 * q, 19 + 4 * q))
        a("ds_write_b64 v15, %s offset:%d" % (vr(32 + 2 * q, 2), q * 2048))
    a("v_lshrrev_b32 v16, 2, v3")
    a("v_and_b32 v17, 3, v3")
    a("v_mul_u32_u24 v18, 21, v2")
    a("v_add_u32 v19, v18, v17")
    a("v_mul_u32_u24 v19, 80, v19")
    a("v_add_u32 v19, %d, v19" % KVB)
    a("v_mul_u32_u24 v18, 80, v18")
    a("v_add_u32 v18, %d, v18" % (KVB + 1600))
    a("v_mov_b32 v20, %d" % ZR)
    a("v_cmp_eq_u32 vcc, v16, v2")
    a("v_cndmask_b32 v16, v20, v19, vcc")
    a("v_cndmask_b32 v17, v20, v18, vcc")
    a("s_waitcnt lgkmcnt(0)")
    a("s_barrier")
    NUM = 40
    for t in range(6):
        fb = 216 + (t & 1) * 20
        for c in range(5):
            if t < 5:
                a("ds_read_b128 %s, v16 offset:%d" % (vr(fb + 4 * c), 320 * t + 16 * c))
            else:
                a("ds_read_b128 %s, v17 offset:%d" % (vr(fb + 4 * c), 16 * c))
        a("s_waitcnt lgkmcnt(0)")
        for c in range(5):
            for P in range(2):
                d = vr(NUM + (P * 6 + t) * 4)
                a("%s %s, %s, %s, %s" % (MF, d, vr(fb + 4 * c), vr(PQ + P * 20 + 4 * c), "0" if c == 0 else d))
    frag_store_setup(a, WS_OA)
    for P in range(2):
        nb = NUM + P * 24
        dn = nb + 20
        a("v_cvt_pk_bf16_f32 v%d, v%d, v%d" % (dn, dn, dn))
        a("v_lshlrev_b32 v%d, 16, v%d" % (dn, dn))
        a("v_add_f32 v%d, 0x358637bd, v%d" % (dn, dn))
        a("v_cvt_pk_bf16_f32 v%d, v%d, v%d" % (dn, dn, dn))
        a("v_lshlrev_b32 v%d, 16, v%d" % (dn, dn))
        a("v_rcp_f32 v%d, v%d" % (dn, dn))
        op = 100 + P * 12
        for m in range(10):
            a("v_cvt_pk_bf16_f32 v%d, v%d, v%d" % (op + m, nb + 2 * m, nb + 2 * m + 1))
        for m in range(10):
            a("v_lshlrev_b32 v%d, 16, v%d" % (nb + 2 * m, op + m))
            a("v_and_b32 v%d, 0xffff0000, v%d" % (nb + 2 * m + 1, op + m))
        for m in range(20):
            a("v_mul_f32 v%d, v%d, v%d" % (nb + m, nb + m, dn))
        for m in range(10):
            a("v_cvt_pk_bf16_f32 v%d, v%d, v%d" % (op + m, nb + 2 * m, nb + 2 * m + 1))
        store_frag(a, op, P)
    stamp(a, 9)
    a("s_branch L_p2")

    a.label("L_k1_B")
    a.vm = list(vm_snapshot)
    a("s_lshl_b32 s28, s20, 7")
    a("s_sub_u32 s28, s28, 16")
    a("v_add_u32 v14, s28, v3")
    a("v_mul_i32_i24 v14, 1280, v14")
    a("v_lshl_add_u32 v14, v2, 4, v14")
    for q in range(5):
        a("s_add_u32 s28, s87, %d" % (4 * q))
        a("s_cmp_ge_u32 s28, 20")
        a("s_cselect_b32 s29, 20, 0")
        a("s_sub_u32 s28, s28, s29")
        a("s_lshl_b32 s28, s28, 6")
        a("buffer_load_dwordx4 %s, v14, s[4:7], s28 offen" % ar(160 + 4 * q), tag=("xh", q))
    for q in range(40):
        a("v_mov_b32 v%d, 0" % (HA + q))
    srd(a, 32, 78, 79, 1280)
    a("v_lshrrev_b32 v14, 4, v0")
    a("s_lshl_b32 s28, s20, 7")
    a("s_lshl_b32 s29, s21, 4")
    a("s_add_u32 s28, s28, s29")
    a("v_add_u32 v14, s28, v14")
    a("v_mul_u32_u24 v15, 1280, v14")
    a("v_lshl_add_u32 v15, v3, 4, v15")
    a("v_lshlrev_b32 v16, 4, v3")
    for c in range(5):
        a("buffer_load_dwordx4 %s, v15, s[4:7], 0 offen offset:%d" % (vr(20 + 4 * c), 256 * c), tag="gx")
        a("buffer_load_dwordx4 %s, v16, s[32:35], 0 offen offset:%d" % (vr(40 + 4 * c), 256 * c), tag="gx")
    a.wait_vm("gx")
    a("v_mov_b32 v60, 0")
    a("v_mov_b32 v61, 0")
    for m in range(20):
        a("v_lshlrev_b32 v62, 16, v%d" % (20 + m))
        a("v_and_b32 v63, 0xffff0000, v%d" % (20 + m))
        a("v_lshlrev_b32 v64, 16, v%d" % (40 + m))
        a("v_and_b32 v65, 0xffff0000, v%d" % (40 + m))
        a("v_mul_f32 v62, v62, v64")
        a("v_mul_f32 v63, v63, v65")
        a("v_cvt_pk_bf16_f32 v62, v62, v63")
        a("v_lshlrev_b32 v63, 16, v62")
        a("v_and_b32 v62, 0xffff0000, v62")
        a("v_add_f32 v60, v60, v63")
        a("v_add_f32 v61, v61, v62")
    a("v_add_f32 v60, v60, v61")
    for sh in (8, 4, 2, 1):
        a("v_add_f32_dpp v60, v60, v60 row_ror:%d row_mask:0xf bank_mask:0xf" % sh)
    a("v_cvt_pk_bf16_f32 v60, v60, v60")
    a("v_lshlrev_b32 v60, 16, v60")
    a("v_mul_f32 v60, s31, v60")
    a("v_exp_f32 v60, -v60")
    a("v_add_f32 v60, 1.0, v60")
    a("v_rcp_f32 v60, v60")
    a("v_cvt_pk_bf16_f32 v60, v60, v60")
    a("v_lshlrev_b32 v60, 16, v60")
    a("v_lshlrev_b32 v14, 2, v14")
    a("v_cmp_eq_u32 vcc, 0, v3")
    a("s_and_saveexec_b64 s[28:29], vcc")
    a("s_mov_b32 s36, 0x%x" % WS_G)
    a("buffer_store_dword v60, v14, s[12:15], s36 offen sc0 sc1", tag="gst")
    a("s_mov_b64 exec, s[28:29]")
    stamp(a, 10)
    a("v_lshlrev_b32 v14, 2, v2")
    a("v_sub_u32 v14, v3, v14")
    for r in range(4):
        a("v_subrev_u32 v15, %d, v14" % r)
        a("v_and_b32 v16, 1, v15")
        a("v_cmp_eq_u32 vcc, 0, v16")
        a("v_cmp_le_i32 s[28:29], 0, v15")
        a("s_and_b64 s[%d:%d], vcc, s[28:29]" % (32 + 2 * r, 33 + 2 * r))
        a("v_cmp_ge_i32 s[28:29], -2, v15")
        a("s_and_b64 s[%d:%d], vcc, s[28:29]" % (40 + 2 * r, 41 + 2 * r))
    a("s_or_b32 s28, s20, s27")
    a("s_cmp_eq_u32 s28, 0")
    for r in range(4):
        a("s_cselect_b64 s[%d:%d], 0, s[%d:%d]" % (48 + 2 * r, 49 + 2 * r, 40 + 2 * r, 41 + 2 * r))
    a("s_mov_b32 s56, 0xffff0000"); a("s_mov_b32 s57, -1")
    a("s_mov_b32 s58, 0"); a("s_mov_b32 s59, -1")
    a("s_mov_b32 s60, 0"); a("s_mov_b32 s61, 0xffff0000")
    stamp(a, 1)
    k1_gemm(a, 1, 0)
    stamp(a, 2)
    KP = 176; VP = 136; QP = 76
    for P in range(2):
        for t in range(5):
            b = KA + (P * 5 + t) * 4
            a("v_cvt_pk_bf16_f32 v%d, v%d, v%d" % (KP + (P + 1) * 10 + 2 * t, b, b + 1))
            a("v_cvt_pk_bf16_f32 v%d, v%d, v%d" % (KP + (P + 1) * 10 + 2 * t + 1, b + 2, b + 3))
            b = VA + (P * 5 + t) * 4
            a("v_cvt_pk_bf16_f32 v%d, v%d, v%d" % (16 + (P * 5 + t) * 2, b, b + 1))
            a("v_cvt_pk_bf16_f32 v%d, v%d, v%d" % (17 + (P * 5 + t) * 2, b + 2, b + 3))
    for P in range(2):
        for t in range(5):
            a("v_mov_b32 v%d, v%d" % (VP + t * 6 + 2 + 2 * P, 16 + (P * 5 + t) * 2))
            a("v_mov_b32 v%d, v%d" % (VP + t * 6 + 3 + 2 * P, 17 + (P * 5 + t) * 2))
    a("v_lshlrev_b32 v15, 3, v1")
    a("s_mul_i32 s28, s27, 5120")
    a("s_add_u32 s28, s28, %d" % EXC)
    a("v_add_u32 v15, s28, v15")
    for t in range(5):
        a("ds_write_b64 v15, %s offset:%d" % (vr(KP + 20 + 2 * t, 2), t * 512))
        a("ds_write_b64 v15, %s offset:%d" % (vr(VP + t * 6 + 4, 2), 2560 + t * 512))
    a("v_lshlrev_b32 v14, 4, v1")
    a("v_add_u32 v14, %d, v14" % HALO)
    a("s_cmp_eq_u32 s27, 0")
    a("s_cbranch_scc1 L_b_w0")
    a("s_mul_i32 s28, s27, 10240")
    a("s_sub_u32 s28, s28, 10240")
    a("v_add_u32 v96, s28, v14")
    for j in range(10):
        a("ds_write_b128 v96, %s offset:%d" % (vr(HA + 4 * j), j * 1024))
    a.label("L_b_w0")
    a("s_waitcnt lgkmcnt(0)")
    a("s_barrier")
    a("s_cmp_eq_u32 s27, 0")
    a("s_cbranch_scc0 L_b_nw0")
    for ww in range(3):
        for j in range(10):
            a("ds_read_b128 %s, v14 offset:%d" % (vr(96 + 4 * j), ww * 10240 + j * 1024))
        a("s_waitcnt lgkmcnt(0)")
        for q in range(40):
            a("v_add_f32 v%d, v%d, v%d" % (HA + q, HA + q, 96 + q))
    for t in range(5):
        b = HA + t * 4
        a("v_cvt_pk_bf16_f32 v%d, v%d, v%d" % (KP + 2 * t, b, b + 1))
        a("v_cvt_pk_bf16_f32 v%d, v%d, v%d" % (KP + 2 * t + 1, b + 2, b + 3))
        b = HA + 20 + t * 4
        a("v_cvt_pk_bf16_f32 v%d, v%d, v%d" % (VP + t * 6, b, b + 1))
        a("v_cvt_pk_bf16_f32 v%d, v%d, v%d" % (VP + t * 6 + 1, b + 2, b + 3))
    a("s_branch L_b_j")
    a.label("L_b_nw0")
    a("v_subrev_u32 v15, 5120, v15")
    for t in range(5):
        a("ds_read_b64 %s, v15 offset:%d" % (vr(KP + 2 * t, 2), t * 512))
        a("ds_read_b64 %s, v15 offset:%d" % (vr(VP + t * 6, 2), 2560 + t * 512))
    a("s_waitcnt lgkmcnt(0)")
    a.label("L_b_j")
    stamp(a, 5)
    k1_gemm(a, 1, 1)
    for P in range(2):
        for t in range(5):
            b = QA + (P * 5 + t) * 4
            a("v_cvt_pk_bf16_f32 v%d, v%d, v%d" % (QP + P * 10 + 2 * t, b, b + 1))
            a("v_cvt_pk_bf16_f32 v%d, v%d, v%d" % (QP + P * 10 + 2 * t + 1, b + 2, b + 3))
    stamp(a, 6)
    a("v_mov_b32 v14, 0xf149f2ca")
    a("s_mov_b32 s30, 0x%x" % SCALE)
    frag_store_setup(a, WS_OB)
    H = range(4)
    def QM(h): return 96 + h * 4
    def TM(h): return 112 + h * 6
    def SBr(h): return 206 + h * 8
    OACC = 16
    for P in range(2):
        for h in H:
            for q in range(2):
                src = QP + P * 10 + 2 * h + q
                if h == 0:
                    a("v_mov_b32 v%d, v%d" % (QM(h) + q, src))
                else:
                    a("v_cndmask_b32 v%d, 0, v%d, s[%d:%d]" % (QM(h) + q, src, 54 + 2 * h, 55 + 2 * h))
                src = QP + P * 10 + 2 * h + 2 + q
                if h == 3:
                    a("v_mov_b32 v%d, v%d" % (QM(h) + 2 + q, src))
                else:
                    a("v_cndmask_b32 v%d, v%d, 0, s[%d:%d]" % (QM(h) + 2 + q, src, 56 + 2 * h, 57 + 2 * h))
        for h in H:
            a("%s %s, %s, %s, 0" % (MF, vr(SBr(h)), vr(KP + P * 10 + 2 * h), vr(QM(h))))
            a("%s %s, %s, %s, 0" % (MF, vr(SBr(h) + 4), vr(KP + (P + 1) * 10 + 2 * h), vr(QM(h))))
        for rnd in range(2):
            for h in H:
                for m in range(4):
                    a("v_cvt_pk_bf16_f32 v%d, v%d, v%d" % (TM(h) + m, SBr(h) + 2 * m, SBr(h) + 2 * m + 1))
            for h in H:
                for m in range(4):
                    a("v_lshlrev_b32 v%d, 16, v%d" % (SBr(h) + 2 * m, TM(h) + m))
                    a("v_and_b32 v%d, 0xffff0000, v%d" % (SBr(h) + 2 * m + 1, TM(h) + m))
            if rnd == 0:
                for h in H:
                    for m in range(8):
                        a("v_mul_f32 v%d, s30, v%d" % (SBr(h) + m, SBr(h) + m))
        for h in H:
            for r in range(4):
                mp = (48 if P == 0 else 40) + 2 * r
                a("v_cndmask_b32 v%d, v14, v%d, s[%d:%d]" % (SBr(h) + r, SBr(h) + r, mp, mp + 1))
                a("v_cndmask_b32 v%d, v14, v%d, s[%d:%d]" % (SBr(h) + 4 + r, SBr(h) + 4 + r, 32 + 2 * r, 33 + 2 * r))
        for h in H:
            s = SBr(h); mx = TM(h) + 4
            a("v_max3_f32 v%d, v%d, v%d, v%d" % (mx, s, s + 1, s + 2))
            a("v_max3_f32 v%d, v%d, v%d, v%d" % (mx, mx, s + 3, s + 4))
            a("v_max3_f32 v%d, v%d, v%d, v%d" % (mx, mx, s + 5, s + 6))
            a("v_max_f32 v%d, v%d, v%d" % (mx, mx, s + 7))
        def xred(op):
            for sw in ("v_permlane16_swap_b32", "v_permlane32_swap_b32"):
                for h in H:
                    a("v_mov_b32 v%d, v%d" % (TM(h) + 5, TM(h) + 4))
                for h in H:
                    a("%s v%d, v%d" % (sw, TM(h) + 4, TM(h) + 5))
                for h in H:
                    a("%s v%d, v%d, v%d" % (op, TM(h) + 4, TM(h) + 4, TM(h) + 5))
        xred("v_max_f32")
        for h in H:
            a("v_mul_f32 v%d, s31, v%d" % (TM(h) + 4, TM(h) + 4))
        for h in H:
            for m in range(8):
                a("v_fma_f32 v%d, v%d, s31, -v%d" % (SBr(h) + m, SBr(h) + m, TM(h) + 4))
        for h in H:
            for m in range(8):
                a("v_exp_f32 v%d, v%d" % (SBr(h) + m, SBr(h) + m))
        for h in H:
            s = SBr(h); sm = TM(h) + 4
            a("v_add_f32 v%d, v%d, v%d" % (sm, s, s + 1))
            for m in range(2, 8):
                a("v_add_f32 v%d, v%d, v%d" % (sm, sm, s + m))
        xred("v_add_f32")
        for h in H:
            a("v_rcp_f32 v%d, v%d" % (TM(h) + 4, TM(h) + 4))
        for h in H:
            for m in range(8):
                a("v_mul_f32 v%d, v%d, v%d" % (SBr(h) + m, SBr(h) + m, TM(h) + 4))
        for h in H:
            for m in range(4):
                a("v_cvt_pk_bf16_f32 v%d, v%d, v%d" % (TM(h) + m, SBr(h) + 2 * m, SBr(h) + 2 * m + 1))
        for h in H:
            for tt in range(2):
                t = h + tt
                a("%s %s, %s, %s, 0" % (MF, vr(OACC + (h * 2 + tt) * 4), vr(VP + t * 6 + 2 * P), vr(TM(h))))
        OP = 48 + P * 10
        for t in range(5):
            if t == 0:
                src = OACC + 0
            elif t == 4:
                src = OACC + (3 * 2 + 1) * 4
            else:
                src = OACC + (t * 2) * 4
                oth = OACC + ((t - 1) * 2 + 1) * 4
                for r in range(4):
                    a("v_cndmask_b32 v%d, v%d, v%d, s[%d:%d]" % (src + r, oth + r, src + r, 54 + 2 * t, 55 + 2 * t))
            a("v_cvt_pk_bf16_f32 v%d, v%d, v%d" % (OP + 2 * t, src, src + 1))
            a("v_cvt_pk_bf16_f32 v%d, v%d, v%d" % (OP + 2 * t + 1, src + 2, src + 3))
        store_frag(a, OP, P)
    stamp(a, 9)

NB2 = 8
def p2_dma(a, u):
    buf = u % NB2
    br = 1 if u < 5 else 0
    a("s_add_u32 s28, s27, %d" % (4 * (u % 5)))
    a("s_mul_i32 s29, s28, 13")
    a("s_lshr_b32 s29, s29, 6")
    a("s_mul_i32 s36, s29, 5")
    a("s_sub_u32 s28, s28, s36")
    a("s_mul_i32 s29, s29, 160")
    a("s_cmp_ge_u32 s28, 3")
    a("s_cselect_b32 s36, 80, 0")
    a("s_cselect_b32 s38, 3, 0")
    a("s_add_u32 s29, s29, s36")
    a("s_sub_u32 s36, s28, s38")
    a("s_mul_i32 s36, s36, %d" % (32 if br else 8))
    a("s_add_u32 s29, s29, s36")
    a("s_mul_i32 s29, s29, 1280")
    a("s_add_u32 s29, s29, s23")
    srdn = 8 if br else 40
    pat = 5 if br else 216
    a("s_cmp_eq_u32 s28, 2")
    a("s_cbranch_scc1 L_p2y%d" % u)
    keep = list(a.vm)
    for i5 in range(5):
        a("s_add_u32 m0, s26, %d" % (buf * 20480 + i5 * 1024))
        a("buffer_load_dwordx4 v%d, s[%d:%d], s29 offen lds" % (pat + i5, srdn, srdn + 3), tag=("dma2", u))
    a("s_branch L_p2j%d" % u)
    a.label("L_p2y%d" % u)
    a.vm = keep
    for i5 in range(5):
        a("s_add_u32 m0, s26, %d" % (buf * 20480 + i5 * 1024))
        a("buffer_load_dwordx4 v%d, s[%d:%d], s29 offen lds" % (pat + 5 + i5, srdn, srdn + 3), tag=("dma2", u))
    a.label("L_p2j%d" % u)

def p2_reads(kk):
    u = kk >> 2; sub = kk & 3; buf = u % NB2
    img = buf * 20480 + sub * 5120
    base = 20 + img // 61440
    img -= (img // 61440) * 61440
    out = []
    for t in range(5):
        f = 24 + (kk % 3) * 20 + t * 4
        for h in range(2):
            out.append("ds_read_b64_tr_b16 %s, v%d offset:%d" % (vr(f + 2 * h, 2), base, img + h * 2560 + 32 * t))
    return out

def gen_k2(a):
    a.label("L_p2")
    a.vm = ["st"] * 8
    a("s_lshl_b32 s37, s20, 2")
    a("s_lshl_b32 s28, s3, 6")
    a("s_sub_u32 s37, s37, s28")
    a("s_add_u32 s37, s37, 64")
    a("s_and_b32 s28, s2, 7")
    a("s_lshr_b32 s29, s2, 3")
    a("s_lshr_b32 s20, s28, 1")
    a("s_lshl_b32 s20, s20, 3")
    a("s_lshr_b32 s30, s29, 2")
    a("s_add_u32 s20, s20, s30")
    a("s_and_b32 s21, s28, 1")
    a("s_lshl_b32 s21, s21, 2")
    a("s_and_b32 s30, s29, 3")
    a("s_add_u32 s21, s21, s30")
    a("s_mul_i32 s23, s21, 160")
    a("v_lshlrev_b32 v4, 4, v1")
    for i5 in range(5):
        dma_row_decode(a, 24, 25, i5, 26)
        a("v_lshrrev_b32 v26, 4, v24")
        a("v_bfe_u32 v27, v24, 2, 2")
        a("v_and_b32 v28, 3, v24")
        a("v_lshlrev_b32 v25, 4, v25")
        a("v_mul_u32_u24 v31, 80, v26")
        a("v_mul_u32_u24 v30, 1280, v24")
        a("v_add_u32 v%d, v25, v30" % (5 + i5))
        a("v_lshl_add_u32 v29, v27, 2, v28")
        a("v_add_u32 v30, v31, v29")
        a("v_mul_u32_u24 v30, 1280, v30")
        a("v_add_u32 v%d, v25, v30" % (10 + i5))
        a("v_mul_u32_u24 v29, 20, v27")
        a("v_add_u32 v29, v29, v28")
        a("v_lshl_add_u32 v30, v26, 2, v29")
        a("v_mul_u32_u24 v30, 1280, v30")
        a("v_add_u32 v%d, v25, v30" % (216 + i5))
        a("v_add_u32 v30, v31, v29")
        a("v_mul_u32_u24 v30, 1280, v30")
        a("v_add_u32 v%d, v25, v30" % (221 + i5))
    a.wait_vm_all()
    a("s_barrier")
    a("s_cmp_lg_u32 s27, 0")
    a("s_cbranch_scc1 L_p2_ns")
    a("v_mov_b32 v24, 1")
    a("s_mov_b64 exec, 1")
    a("buffer_atomic_add v24, off, s[16:19], s37 offset:64")
    a.vm.pop()
    a("s_mov_b64 exec, -1")
    a.label("L_p2_ns")
    srd(a, 8, 76, 77, 819200)
    srd(a, 40, 70, 71, 819200)
    srd(a, 32, 80, 81, 2621440)
    a("s_lshl_b32 s22, s20, 2")
    a("s_add_u32 s22, s22, s27")
    a("s_mul_i32 s22, s22, 20480")
    for u in range(4):
        p2_dma(a, u)
    a("s_lshr_b32 s30, s20, 1")
    a("s_lshl_b32 s30, s30, 2")
    stamp(a, 11)
    poll1(a, "L_prb", 64, 8, 23, False)
    stamp(a, 12)
    def oloads(br):
        a("s_add_u32 s28, s22, 0x%x" % (WS_OB if br else WS_OA))
        for ks in range(20):
            a("buffer_load_dwordx4 %s, v4, s[12:15], s28 offen" % ar((0 if br else 80) + ks * 4), tag=("x", (0 if br else 20) + ks))
            a("s_add_u32 s28, s28, 1024")
    oloads(1)
    a("s_lshl_b32 s28, s20, 6")
    a("s_lshl_b32 s29, s27, 4")
    a("s_add_u32 s28, s28, s29")
    a("v_add_u32 v16, s28, v3")
    a("v_lshlrev_b32 v17, 2, v16")
    a("s_mov_b32 s29, 0x%x" % WS_G)
    a("buffer_load_dword v18, v17, s[12:15], s29 offen", tag="g")
    a("v_lshrrev_b32 v24, 2, v3")
    a("v_and_b32 v25, 3, v3")
    a("v_lshl_add_u32 v24, v2, 2, v24")
    a("v_mul_u32_u24 v24, 160, v24")
    a("v_lshl_add_u32 v20, v25, 3, v24")
    a("v_add_u32 v21, 61440, v20")
    a("v_add_u32 v22, 61440, v21")
    ACB = 96; ACA = 116
    a.wait_vm(("dma2", 0))
    a("s_barrier")
    p2_dma(a, 4)
    for r in p2_reads(0) + p2_reads(1): a(r)
    for kk in range(40):
        a("s_waitcnt lgkmcnt(%d)" % (10 if kk < 39 else 0))
        if kk == 12:
            stamp(a, 13)
            poll1(a, "L_pra", 128, 8, 23, False)
            oloads(0)
        a.wait_vm(("x", kk))
        nx = kk + 2
        rd = []
        if nx < 40:
            if nx % 4 == 0:
                un = nx // 4
                a.wait_vm(("dma2", un)); a("s_barrier")
                if un + 4 < 10:
                    p2_dma(a, un + 4)
            rd = p2_reads(nx)
        acc0 = ACB if kk < 20 else ACA
        mf = ["%s %s, %s, %s, %s" % (MF, vr(acc0 + t * 4), vr(24 + (kk % 3) * 20 + t * 4), ar(kk * 4), "0" if kk % 20 == 0 else vr(acc0 + t * 4)) for t in range(5)]
        interleave(a, mf, rd)
    stamp(a, 14)
    a.wait_vm("g")
    a("v_mul_u32_u24 v16, 1280, v16")
    a("v_lshl_add_u32 v16, v2, 3, v16")
    a("v_sub_f32 v19, 1.0, v18")
    a("v_cvt_pk_bf16_f32 v19, v19, v19")
    a("v_lshlrev_b32 v19, 16, v19")
    for t in range(5):
        A0 = ACA + t * 4; B0 = ACB + t * 4
        for X in (A0, B0):
            a("v_cvt_pk_bf16_f32 v28, v%d, v%d" % (X, X + 1))
            a("v_cvt_pk_bf16_f32 v29, v%d, v%d" % (X + 2, X + 3))
            a("v_lshlrev_b32 v%d, 16, v28" % X)
            a("v_and_b32 v%d, 0xffff0000, v28" % (X + 1))
            a("v_lshlrev_b32 v%d, 16, v29" % (X + 2))
            a("v_and_b32 v%d, 0xffff0000, v29" % (X + 3))
            mul = 18 if X == A0 else 19
            for r in range(4):
                a("v_mul_f32 v%d, v%d, v%d" % (X + r, X + r, mul))
            a("v_cvt_pk_bf16_f32 v28, v%d, v%d" % (X, X + 1))
            a("v_cvt_pk_bf16_f32 v29, v%d, v%d" % (X + 2, X + 3))
            a("v_lshlrev_b32 v%d, 16, v28" % X)
            a("v_and_b32 v%d, 0xffff0000, v28" % (X + 1))
            a("v_lshlrev_b32 v%d, 16, v29" % (X + 2))
            a("v_and_b32 v%d, 0xffff0000, v29" % (X + 3))
        for r in range(4):
            a("v_add_f32 v%d, v%d, v%d" % (A0 + r, A0 + r, B0 + r))
        a("v_cvt_pk_bf16_f32 v%d, v%d, v%d" % (B0, A0, A0 + 1))
        a("v_cvt_pk_bf16_f32 v%d, v%d, v%d" % (B0 + 1, A0 + 2, A0 + 3))
        a("buffer_store_dwordx2 %s, v16, s[32:35], s23 offen offset:%d" % (vr(B0, 2), t * 32))
    stamp(a, 15)
    a.label("L_k1_end")
    a("s_endpgm")

HEADER = open("cdna_kernels/%s.s.ref" % NAME).read().split("; Override launch")[0]

def main(path):
    a = Asm()
    a.raw(HEADER.rstrip())
    a.raw("; @launch grid=(256,1,1) block=(256,1,1) lds=163840")
    a.raw('.amdgcn_target "amdgcn-amd-amdhsa--gfx950"\n.text')
    gen_k1(a)
    gen_k2(a)
    a.raw('.section .rodata,"a"')
    for k in (KN,):
        a.raw(""".p2align 6
.amdhsa_kernel %s
  .amdhsa_next_free_vgpr 512
  .amdhsa_next_free_sgpr 102
  .amdhsa_accum_offset 256
  .amdhsa_group_segment_fixed_size 0
  .amdhsa_kernarg_size 88
  .amdhsa_user_sgpr_count 2
  .amdhsa_user_sgpr_kernarg_segment_ptr 1
  .amdhsa_system_sgpr_workgroup_id_x 1
.end_amdhsa_kernel""" % k)
    open(path, "w").write(a.text())
    print("instructions:", a.n_ins)

if __name__ == "__main__":
    if len(sys.argv) > 2 and sys.argv[2] == "stamps":
        STAMPS = True
    main(sys.argv[1] if len(sys.argv) > 1 else "cdna_kernels/%s.s" % NAME)
```

```python
import sys
sys.path.insert(0, "tools")
from emit import Asm

NAME = "gated_mix__linear_kernel_hedgehog__sliding_local_dilated__prompt"
KN = NAME + "_kernel"
WS_KVT = 0
WS_G = 0x20000
WS_OA = 0x40000
WS_OB = 0x40000 + 0x280000
L2E = 0x3fb8aa3b
SCALE = 0x3e64f92e
MF = "v_mfma_f32_16x16x32_bf16"

NB1 = 5
XR = NB1 * 20480
SMALL = XR + 49152
WPHI = SMALL
ZR = SMALL + 3328
KVB = 0
VFR = 81920
PHI = 102400
PHI_STRIDE = 352
HALO = 81920
EXC = 81920 + 30720

STAMPS = False
WS_ST = 0x800000
def stamp(a, n, kern=0):
    if not STAMPS: return
    a("s_memtime s[90:91]")
    a("s_waitcnt lgkmcnt(0)")
    a("v_accvgpr_write_b32 a200, s90")
    a("s_lshl_b32 s92, s2, 2")
    a("s_add_u32 s92, s92, s27")
    a("s_lshl_b32 s92, s92, 8")
    a("s_add_u32 s92, s92, 0x%x" % (WS_ST + kern * 0x20000 + n * 4))
    a("buffer_store_dword a200, off, s[12:15], s92")
    a("s_memrealtime s[90:91]")
    a("s_waitcnt lgkmcnt(0)")
    a("v_accvgpr_write_b32 a201, s90")
    a("buffer_store_dword a201, off, s[12:15], s92 offset:64")
    if n == 0:
        a("v_accvgpr_write_b32 a202, s94")
        a("buffer_store_dword a202, off, s[12:15], s92 offset:128")


def vr(b, n=4):
    return "v[%d:%d]" % (b, b + n - 1)
def ar(b, n=4):
    return "a[%d:%d]" % (b, b + n - 1)

def srd(a, d, lo, hi, size):
    a("s_mov_b32 s%d, s%d" % (d, lo))
    a("s_mov_b32 s%d, s%d" % (d + 1, hi))
    a("s_mov_b32 s%d, 0x%x" % (d + 2, size))
    a("s_mov_b32 s%d, 0x00020000" % (d + 3))

def load_kernargs(a):
    a("s_load_dwordx16 s[64:79], s[0:1], 0")
    a("s_load_dwordx4 s[80:83], s[0:1], 64")
    a("s_load_dwordx2 s[84:85], s[0:1], 80")

def dma_row_decode(a, vdst_p, vdst_cc, i5, vt):
    a("v_add_u32 v%d, %d, v1" % (vt, i5 * 64))
    a("v_mul_u32_u24 v%d, 0x199a, v%d" % (vdst_p, vt))
    a("v_lshrrev_b32 v%d, 16, v%d" % (vdst_p, vdst_p))
    a("v_mul_u32_u24 v%d, 10, v%d" % (vdst_cc, vdst_p))
    a("v_sub_u32 v%d, v%d, v%d" % (vdst_cc, vt, vdst_cc))

def poll(a, name, off, target, vt=15):
    a("s_mov_b32 s29, 0x20000")
    a.label(name)
    a("buffer_load_dword v%d, off, s[16:19], s30 offset:%d sc1" % (vt, off))
    a.wait_vm_all()
    a("v_readfirstlane_b32 s28, v%d" % vt)
    a("s_cmp_ge_u32 s28, %d" % target)
    a("s_cbranch_scc1 %s_done" % name)
    a("s_sleep 4")
    a("s_sub_u32 s29, s29, 1")
    a("s_cmp_lg_u32 s29, 0")
    a("s_cbranch_scc1 %s" % name)
    a.label(name + "_done")

def poll1(a, name, off, target, vt=15, inv=False):
    keep = list(a.vm)
    a("s_cmp_lg_u32 s27, 0")
    a("s_cbranch_scc1 %s_w" % name)
    poll(a, name, off, target, vt)
    a.vm = keep
    a.label(name + "_w")
    a("s_barrier")
    if inv:
        a("buffer_inv sc1")

def signal(a, name, off):
    a("s_cmp_lg_u32 s27, 0")
    a("s_cbranch_scc1 %s" % name)
    a("v_mov_b32 v14, 1")
    a("s_lshl_b32 s28, s21, 2")
    a("s_mov_b64 exec, 1")
    a("buffer_atomic_add v14, off, s[16:19], s28 offset:%d" % off)
    a.vm.pop()
    a("s_mov_b64 exec, -1")
    a.label(name)

def interleave(a, mf, rd, rate=2):
    k = 0; m = len(rd)
    for i, x in enumerate(mf):
        a(x)
        for _ in range(rate):
            if k < m:
                a(rd[k]); k += 1
    while k < m:
        a(rd[k]); k += 1

SEQ = [("P", u) for u in range(10)] + [("Q", u) for u in range(5)]
def ubuf(n):
    return n % 5 if n < 10 else (n - 10) % 4
STEPS = []
for n, (kind, u) in enumerate(SEQ):
    if kind == "P":
        for s in range(2): STEPS.append((n, "P", 2 * u + s, s))
    else:
        for s in range(4): STEPS.append((n, "Q", 4 * u + s, s))
KA = 96; VA = 136; QA = 96; HA = 216; WFA = 180
XP2 = 1; XA0 = 14

def k1_dma(a, n, st="s28"):
    kind, u = SEQ[n]
    buf = ubuf(n)
    if kind == "P":
        a("s_add_u32 %s, s86, %d" % (st, u))
        a("s_cmp_ge_u32 %s, 10" % st)
        a("s_cselect_b32 s101, 10, 0")
        a("s_sub_u32 %s, %s, s101" % (st, st))
        a("s_mul_i32 %s, %s, 245760" % (st, st))
        a("s_add_u32 %s, %s, s24" % (st, st))
    else:
        a("s_add_u32 %s, s87, %d" % (st, 4 * u))
        a("s_cmp_ge_u32 %s, 20" % st)
        a("s_cselect_b32 s101, 20, 0")
        a("s_sub_u32 %s, %s, s101" % (st, st))
        a("s_mul_i32 %s, %s, 122880" % (st, st))
        a("s_add_u32 %s, %s, s25" % (st, st))
    for i5 in range(5):
        a("s_add_u32 m0, s26, %d" % (buf * 20480 + i5 * 1024))
        a("buffer_load_dwordx4 v%d, s[8:11], %s offen lds" % (5 + i5, st), tag=("dma", n))

def q_groups(a, br):
    G = []
    G.append([(lambda: a.wait_vm(("dma", 10)), None), ("s_barrier", None)])
    rr = k1_reads(20, br) + k1_reads(21, br)
    for i in range(0, len(rr), 4):
        G.append([(r, None) for r in rr[i:i + 4]])
    for si in range(20, 40):
        g = [("s_waitcnt lgkmcnt(%d)" % (10 if si < 39 else 0), None)]
        rd = []
        if si + 2 < 40:
            n2 = STEPS[si + 2][0]
            if n2 != STEPS[si + 1][0]:
                g.append(((lambda n2=n2: a.wait_vm(("dma", n2))), None))
                g.append(("s_barrier", None))
                if n2 == 12:
                    g.append(((lambda: k1_dma(a, 14, "s100")), None))
            rd = k1_reads(si + 2, br)
        mf = k1_mfmas(si, br)
        k = 0
        for x in mf:
            g.append((x, None))
            for _ in range(2):
                if k < len(rd):
                    g.append((rd[k], None)); k += 1
            G.append(g); g = []
    return G

def tr_base(img, blk):
    grp = img // 61440
    return (12 if blk else 10) + grp, img - grp * 61440

def fset(si, br=1):
    if STEPS[si][1] == "P":
        return 16 + (si & 1) * 40
    return (16, 36, 56)[si % 3] if br == 1 else (216, 236, 76)[si % 3]
def qacc(br):
    return 96 if br == 1 else 176

def k1_reads(si, br):
    n, kind, ks, sub = STEPS[si]
    buf = ubuf(n)
    fs = fset(si, br)
    out = []
    nt = 10 if kind == "P" else 5
    for j in range(nt):
        t = j % 5
        if kind == "P":
            seg = j // 5
            img = buf * 20480 + (sub * 2 + seg) * 5120
            blk = (seg == 0 and br == 0)
        else:
            img = buf * 20480 + sub * 5120
            blk = (br == 0)
        base, off = tr_base(img, blk)
        co = 8 * t if blk else 32 * t
        for h in range(2):
            out.append("ds_read_b64_tr_b16 %s, v%d offset:%d" % (vr(fs + j * 4 + 2 * h, 2), base, off + h * 2560 + co))
    return out

def k1_mfmas(si, br=1):
    n, kind, ks, sub = STEPS[si]
    fs = fset(si, br)
    out = []
    nt = 10 if kind == "P" else 5
    for j in range(nt):
        t = j % 5
        f = vr(fs + j * 4)
        for P in range(2):
            x = ar((ks * 2 + P) * 4)
            if kind == "Q":
                acc = vr(qacc(br) + (P * 5 + t) * 4)
                out.append("%s %s, %s, %s, %s" % (MF, acc, f, x, "0" if ks == 0 else acc))
            elif j < 5:
                acc = vr(KA + (P * 5 + t) * 4)
                out.append("%s %s, %s, %s, %s" % (MF, acc, f, x, "0" if ks == 0 else acc))
            else:
                acc = vr(VA + (P * 5 + t) * 4)
                out.append("%s %s, %s, %s, %s" % (MF, acc, x, f, "0" if ks == 0 else acc))
    return out

UPRE = 4

def xdma(a, c):
    a("s_add_u32 s29, s86, %d" % c)
    a("s_cmp_ge_u32 s29, 10")
    a("s_cselect_b32 s101, 10, 0")
    a("s_sub_u32 s29, s29, s101")
    a("s_lshl_b32 s29, s29, 7")
    for j in range(4):
        a("s_add_u32 m0, s23, %d" % ((c % 3) * 4096 + j * 1024))
        a("s_add_u32 s28, s29, %d" % (j * 10240))
        a("buffer_load_dwordx4 v%d, s[4:7], s28 offen lds" % (4 if j % 2 == 0 else XP2), tag=("xc", c))

def xreads(c):
    out = []
    for p in range(2):
        for P in range(2):
            out.append("ds_read_b128 %s, v%d offset:%d" % (ar(((2 * c + p) * 2 + P) * 4), XA0 + p, (c % 3) * 4096 + P * 2048))
    return out

def wo_prefetch(a):
    a("s_lshr_b32 s28, s2, 3")
    a("s_cmp_lt_u32 s28, 16")
    a("s_cselect_b32 s96, s70, s76")
    a("s_cselect_b32 s97, s71, s77")
    a("s_mov_b32 s98, 819200")
    a("s_mov_b32 s99, 0x00020000")
    a("s_and_b32 s28, s28, 15")
    a("s_mul_i32 s28, s28, 40")
    a("s_mul_i32 s29, s27, 10")
    a("s_add_u32 s28, s28, s29")
    a("s_mul_i32 s28, s28, 1280")
    a("s_and_b32 s29, s2, 1")
    a("s_mul_i32 s29, s29, 640")
    a("s_add_u32 s28, s28, s29")
    a("v_lshlrev_b32 v14, 4, v1")
    a("s_mov_b32 s100, -1")
    a("s_mov_b32 s101, 0xff")
    a("s_mov_b64 exec, s[100:101]")
    for r in range(10):
        a("buffer_load_dwordx4 a[240:243], v14, s[96:99], s28 offen", tag="pf")
        a("s_add_u32 s28, s28, 1280")
    a("s_mov_b64 exec, -1")

def k1_gemm(a, br, phase, first_hook=None):
    if phase == 0:
        a("v_lshrrev_b32 v16, 1, v3")
        a("v_xor_b32 v16, v16, v2")
        a("v_lshlrev_b32 v17, 7, v3")
        a("v_add_u32 v17, s23, v17")
        a("v_lshl_add_u32 v14, v16, 4, v17")
        a("v_xor_b32 v15, 64, v14")
        a("v_xor_b32 v1, 64, v4")
        a.wait_vm(("xc", 0))
        for r in xreads(0):
            a(r)
        a.wait_vm(("dma", 0), "lgkmcnt(0)")
        a("s_barrier")
        xdma(a, 3)
        if first_hook: first_hook()
        lo, hi = 0, 20
    else:
        a.wait_vm(("dma", 10))
        a("s_barrier")
        for r in k1_reads(20, br) + k1_reads(21, br):
            a(r)
        for si in range(20, 40):
            n = STEPS[si][0]
            a("s_waitcnt lgkmcnt(%d)" % (10 if si < 39 else 0))
            rd = []
            if si + 2 < 40:
                n2 = STEPS[si + 2][0]
                if n2 != STEPS[si + 1][0]:
                    a.wait_vm(("dma", n2))
                    a("s_barrier")
                    if n2 == 12:
                        k1_dma(a, 14)
                rd = k1_reads(si + 2, br)
            interleave(a, k1_mfmas(si), rd)
        return
    for r in k1_reads(lo, br):
        a(r)
    pend_x = None
    for si in range(lo, hi):
        n, kind, ks, sub = STEPS[si]
        a("s_waitcnt lgkmcnt(0)")
        if pend_x is not None:
            if pend_x + 3 < 10:
                xdma(a, pend_x + 3)
            pend_x = None
        rd = []
        if si + 1 < hi:
            n2, kind2, ks2, _ = STEPS[si + 1]
            if kind2 == "P" and ks2 % 2 == 0:
                a.wait_vm(("xc", ks2 // 2))
                rd += xreads(ks2 // 2)
                pend_x = ks2 // 2
            if n2 != n:
                a.wait_vm(("dma", n2))
                a("s_barrier")
                if n2 <= 9:
                    k1_dma(a, n2 + 3)
                elif n2 == 11:
                    k1_dma(a, 14)
            rd += k1_reads(si + 1, br)
        interleave(a, k1_mfmas(si), rd)
        if kind == "P" and br == 1:
            a("s_cmp_eq_u32 s27, %d" % (ks & 3))
            a("s_cbranch_scc0 L_h%d" % ks)
            a.wait_vm(("xh", ks >> 2))
            fs = 16 + (si & 1) * 40
            for j in range(10):
                f = vr(fs + j * 4)
                x = ar(160 + (ks >> 2) * 4)
                acc = vr(HA + j * 4)
                if j < 5:
                    a("%s %s, %s, %s, %s" % (MF, acc, f, x, acc))
                else:
                    a("%s %s, %s, %s, %s" % (MF, acc, x, f, acc))
            a.label("L_h%d" % ks)
    if phase == 0:
        a("s_barrier")
        k1_dma(a, 13)
        a("v_and_b32 v1, 63, v0")
        wo_prefetch(a)

def load_wphi_frags(a):
    for tp in range(5):
        for c in range(3):
            f = WFA + (tp * 3 + c) * 4
            a("ds_read_b64_tr_b16 %s, v14 offset:%d" % (ar(f, 2), (8 * c) * 40 + 8 * tp))
            if c < 2:
                a("ds_read_b64_tr_b16 %s, v14 offset:%d" % (ar(f + 2, 2), (8 * c + 4) * 40 + 8 * tp))
            else:
                a("v_accvgpr_write_b32 a%d, 0" % (f + 2))
                a("v_accvgpr_write_b32 a%d, 0" % (f + 3))

def phi_stage(a, acc, out, T):
    kp = T; pk = T + 12; em = T + 32; tmp = T + 52
    for t in range(5):
        a("v_cvt_pk_bf16_f32 v%d, v%d, v%d" % (kp + 2 * t, acc + 4 * t, acc + 4 * t + 1))
        a("v_cvt_pk_bf16_f32 v%d, v%d, v%d" % (kp + 2 * t + 1, acc + 4 * t + 2, acc + 4 * t + 3))
    a("v_mov_b32 v%d, 0" % (kp + 10))
    a("v_mov_b32 v%d, 0" % (kp + 11))
    for c in range(3):
        for tp in range(5):
            d = vr(pk + 4 * tp)
            a("%s %s, %s, %s, %s" % (MF, d, ar(WFA + (tp * 3 + c) * 4), vr(kp + 4 * c), "0" if c == 0 else d))
    for m in range(10):
        a("v_cvt_pk_bf16_f32 v%d, v%d, v%d" % (kp + m, pk + 2 * m, pk + 2 * m + 1))
    for m in range(10):
        a("v_lshlrev_b32 v%d, 16, v%d" % (pk + 2 * m, kp + m))
        a("v_and_b32 v%d, 0xffff0000, v%d" % (pk + 2 * m + 1, kp + m))
    mx = tmp; mn = tmp + 1; s1 = tmp + 2; s2 = tmp + 3
    a("v_max3_f32 v%d, v%d, v%d, v%d" % (mx, pk, pk + 1, pk + 2))
    a("v_min3_f32 v%d, v%d, v%d, v%d" % (mn, pk, pk + 1, pk + 2))
    for m in range(3, 19, 2):
        a("v_max3_f32 v%d, v%d, v%d, v%d" % (mx, mx, pk + m, pk + m + 1))
        a("v_min3_f32 v%d, v%d, v%d, v%d" % (mn, mn, pk + m, pk + m + 1))
    a("v_max_f32 v%d, v%d, v%d" % (mx, mx, pk + 19))
    a("v_min_f32 v%d, v%d, v%d" % (mn, mn, pk + 19))
    a("v_mul_f32 v%d, s31, v%d" % (mx, mx))
    a("v_mul_f32 v%d, s31, v%d" % (mn, mn))
    a("v_mov_b32 v%d, v%d" % (tmp + 5, mx))
    a("v_mov_b32 v%d, v%d" % (tmp + 4, mx))
    a("v_mov_b32 v%d, v%d" % (tmp + 7, mn))
    a("v_mov_b32 v%d, v%d" % (tmp + 6, mn))
    for m in range(10):
        a("v_pk_fma_f32 %s, %s, s[62:63], %s neg_lo:[1,0,0] neg_hi:[1,0,0]" % (vr(em + 2 * m, 2), vr(pk + 2 * m, 2), vr(tmp + 6, 2)))
        a("v_pk_fma_f32 %s, %s, s[62:63], %s neg_lo:[0,0,1] neg_hi:[0,0,1]" % (vr(pk + 2 * m, 2), vr(pk + 2 * m, 2), vr(tmp + 4, 2)))
    for m in range(20):
        a("v_exp_f32 v%d, v%d" % (pk + m, pk + m))
        a("v_exp_f32 v%d, v%d" % (em + m, em + m))
    a("v_pk_add_f32 %s, %s, %s" % (vr(tmp + 4, 2), vr(pk, 2), vr(pk + 2, 2)))
    a("v_pk_add_f32 %s, %s, %s" % (vr(tmp + 6, 2), vr(em, 2), vr(em + 2, 2)))
    for m in range(2, 10):
        a("v_pk_add_f32 %s, %s, %s" % (vr(tmp + 4, 2), vr(tmp + 4, 2), vr(pk + 2 * m, 2)))
        a("v_pk_add_f32 %s, %s, %s" % (vr(tmp + 6, 2), vr(tmp + 6, 2), vr(em + 2 * m, 2)))
    a("v_add_f32 v%d, v%d, v%d" % (s1, tmp + 4, tmp + 5))
    a("v_add_f32 v%d, v%d, v%d" % (s2, tmp + 6, tmp + 7))
    a("v_rcp_f32 v%d, v%d" % (tmp + 4, s1))
    a("v_rcp_f32 v%d, v%d" % (tmp + 6, s2))
    a("v_mov_b32 v%d, v%d" % (tmp + 5, tmp + 4))
    a("v_mov_b32 v%d, v%d" % (tmp + 7, tmp + 6))
    for m in range(10):
        a("v_pk_mul_f32 %s, %s, %s" % (vr(pk + 2 * m, 2), vr(pk + 2 * m, 2), vr(tmp + 4, 2)))
        a("v_pk_mul_f32 %s, %s, %s" % (vr(em + 2 * m, 2), vr(em + 2 * m, 2), vr(tmp + 6, 2)))
    for m in range(10):
        a("v_cvt_pk_bf16_f32 v%d, v%d, v%d" % (out + m, pk + 2 * m, pk + 2 * m + 1))
        a("v_cvt_pk_bf16_f32 v%d, v%d, v%d" % (out + 10 + m, em + 2 * m, em + 2 * m + 1))

def store_frag(a, op, P):
    a("buffer_store_dwordx4 %s, v15, s[12:15], s22 offen offset:%d sc0 sc1" % (vr(op), 0), tag="st")
    a("buffer_store_dwordx4 %s, v15, s[12:15], s22 offen offset:%d sc0 sc1" % (vr(op + 4), 1024), tag="st")
    a("buffer_store_dwordx2 %s, v15, s[12:15], s23 offen sc0 sc1" % (vr(op + 8, 2)), tag="st")
    if P == 0:
        a("s_add_u32 s22, s22, 20480")
        a("s_add_u32 s23, s23, 20480")

def frag_store_setup(a, wsoff):
    a("s_lshl_b32 s22, s20, 3")
    a("s_lshl_b32 s28, s27, 1")
    a("s_add_u32 s22, s22, s28")
    a("s_mul_i32 s22, s22, 20480")
    a("s_add_u32 s22, s22, 0x%x" % wsoff)
    a("s_lshr_b32 s28, s21, 1")
    a("s_mul_i32 s28, s28, 5120")
    a("s_add_u32 s22, s22, s28")
    a("s_add_u32 s23, s22, 2048")
    a("s_and_b32 s28, s21, 1")
    a("s_mul_i32 s29, s28, 3072")
    a("s_add_u32 s22, s22, s29")
    a("s_lshl_b32 s28, s28, 3")
    a("s_add_u32 s23, s23, s28")
    a("v_lshlrev_b32 v15, 4, v1")

def gen_k1(a):
    a.raw(".globl %s\n.p2align 8\n.type %s,@function\n%s:" % (KN, KN, KN))
    a("s_cmp_ge_u32 s2, 256")
    a("s_cbranch_scc1 L_k1_end")
    if STAMPS: a("s_memrealtime s[94:95]")
    load_kernargs(a)
    a("s_and_b32 s28, s2, 7")
    a("s_lshr_b32 s29, s2, 3")
    a("s_lshr_b32 s20, s28, 2")
    a("s_lshl_b32 s20, s20, 3")
    a("s_lshr_b32 s30, s29, 2")
    a("s_add_u32 s20, s20, s30")
    a("s_and_b32 s21, s28, 3")
    a("s_lshl_b32 s21, s21, 2")
    a("s_and_b32 s30, s29, 3")
    a("s_add_u32 s21, s21, s30")
    a("s_lshr_b32 s3, s21, 3")
    a("s_and_b32 s21, s21, 7")
    a("v_and_b32 v1, 63, v0")
    a("v_lshrrev_b32 v2, 6, v0")
    a("v_readfirstlane_b32 s27, v2")
    a("v_lshrrev_b32 v2, 4, v1")
    a("v_and_b32 v3, 15, v1")
    a("s_lshl_b32 s28, s20, 7")
    a("s_lshl_b32 s29, s27, 5")
    a("s_add_u32 s28, s28, s29")
    a("v_lshrrev_b32 v14, 3, v1")
    a("v_add_u32 v4, s28, v14")
    a("v_mul_u32_u24 v4, 1280, v4")
    a("v_lshrrev_b32 v14, 1, v14")
    a("v_and_b32 v15, 7, v1")
    a("v_xor_b32 v14, v14, v15")
    a("v_lshl_add_u32 v4, v14, 4, v4")
    a("s_lshr_b32 s28, s27, 1")
    a("s_mul_i32 s24, s28, 122880")
    a("s_and_b32 s28, s27, 1")
    a("s_add_u32 s28, s28, 1")
    a("s_mul_i32 s28, s28, 1280")
    a("s_add_u32 s24, s24, s28")
    a("s_mul_i32 s28, s21, 160")
    a("s_add_u32 s24, s24, s28")
    a("s_mov_b32 s25, s28")
    a("s_lshr_b32 s29, s2, 3")
    a("s_lshr_b32 s86, s29, 2")
    a("s_and_b32 s29, s29, 3")
    a("s_lshl_b32 s29, s29, 1")
    a("s_add_u32 s86, s86, s29")
    a("s_cmp_ge_u32 s86, 10")
    a("s_cselect_b32 s29, 10, 0")
    a("s_sub_u32 s86, s86, s29")
    a("s_lshl_b32 s87, s86, 1")
    a("s_add_u32 s87, s87, s27")
    a("s_cmp_ge_u32 s87, 20")
    a("s_cselect_b32 s29, 20, 0")
    a("s_sub_u32 s87, s87, s29")
    a("s_mul_i32 s26, s27, 5120")
    for i5 in range(5):
        dma_row_decode(a, 14, 15, i5, 16)
        a("v_lshrrev_b32 v16, 4, v14")
        a("v_bfe_u32 v17, v14, 2, 2")
        a("v_and_b32 v18, 3, v14")
        a("v_lshlrev_b32 v17, 3, v17")
        a("v_lshl_add_u32 v17, v16, 2, v17")
        a("v_add_u32 v17, v17, v18")
        a("v_mul_u32_u24 v17, 3840, v17")
        a("v_lshl_add_u32 v%d, v15, 4, v17" % (5 + i5))
    a("s_mul_i32 s23, s27, 12288")
    a("s_add_u32 s23, s23, %d" % XR)
    a("v_xor_b32 v240, 64, v4")
    a("s_waitcnt lgkmcnt(0)")
    srd(a, 4, 64, 65, 2621440)
    a("s_cmp_eq_u32 s3, 0")
    a("s_cselect_b32 s8, s66, s74")
    a("s_cselect_b32 s9, s67, s75")
    a("s_mov_b32 s10, 2457600")
    a("s_mov_b32 s11, 0x00020000")
    srd(a, 12, 84, 85, 0x10000000)
    srd(a, 16, 82, 83, 256)
    a("s_or_b32 s28, s3, s27")
    a("s_cmp_lg_u32 s28, 0")
    a("s_cbranch_scc1 L_nz")
    a("v_mov_b32 v16, 0"); a("v_mov_b32 v17, 0"); a("v_mov_b32 v18, 0"); a("v_mov_b32 v19, 0")
    a("v_lshlrev_b32 v15, 4, v1")
    a("s_lshl_b32 s28, s21, 14")
    a("s_lshl_b32 s29, s20, 10")
    a("s_add_u32 s28, s28, s29")
    a("buffer_store_dwordx4 v[16:19], v15, s[12:15], s28 offen sc0 sc1")
    a.vm.pop()
    a.label("L_nz")
    a("v_mov_b32 v241, v1")
    a("v_mov_b32 v1, v240")
    xdma(a, 0)
    k1_dma(a, 0)
    xdma(a, 1)
    k1_dma(a, 1)
    xdma(a, 2)
    k1_dma(a, 2)
    k1_dma(a, 3)
    a("v_mov_b32 v1, v241")
    stamp(a, 0)
    a("v_lshrrev_b32 v16, 2, v3")
    a("v_and_b32 v17, 3, v3")
    a("v_lshl_add_u32 v16, v2, 2, v16")
    a("v_mul_u32_u24 v16, 160, v16")
    a("v_lshl_add_u32 v10, v17, 3, v16")
    a("v_add_u32 v11, 61440, v10")
    a("v_mul_u32_u24 v17, 40, v17")
    a("v_add_u32 v12, v16, v17")
    a("v_add_u32 v13, 61440, v12")
    a("s_mov_b32 s31, 0x%x" % L2E)
    a("s_mov_b32 s62, s31")
    a("s_mov_b32 s63, s31")
    a("s_cmp_eq_u32 s3, 0")
    a("s_cbranch_scc0 L_k1_B")
    vm_snapshot = list(a.vm)

    srd(a, 32, 68, 69, 25600)
    a("s_mul_i32 s28, s21, 3200")
    a("v_lshlrev_b32 v15, 4, v0")
    a("buffer_load_dwordx4 v[16:19], v15, s[32:35], s28 offen", tag="wphi")
    a("v_mov_b32 v20, 0"); a("v_mov_b32 v21, 0"); a("v_mov_b32 v22, 0"); a("v_mov_b32 v23, 0")
    a("v_add_u32 v24, %d, v15" % ZR)
    a("v_cmp_gt_u32 vcc, 128, v0")
    a("s_and_saveexec_b64 s[28:29], vcc")
    a("ds_write_b128 v24, v[20:23]")
    a("s_mov_b64 exec, s[28:29]")
    a.wait_vm("wphi")
    a("v_add_u32 v24, %d, v15" % WPHI)
    a("v_cmp_gt_u32 vcc, 200, v0")
    a("s_and_saveexec_b64 s[28:29], vcc")
    a("ds_write_b128 v24, v[16:19]")
    a("s_mov_b64 exec, s[28:29]")
    stamp(a, 1)
    def hookZ():
        a("v_mov_b32 v16, v14")
        signal(a, "L_sz", 0)
        a("v_mov_b32 v14, v16")
    k1_gemm(a, 0, 0, hookZ)
    stamp(a, 2)
    a("s_lshl_b32 s30, s21, 2")
    a("buffer_load_dword a250, off, s[16:19], s30 sc1", tag="zf")
    a("v_lshrrev_b32 v16, 2, v3")
    a("v_and_b32 v17, 3, v3")
    a("v_mul_u32_u24 v18, 800, v2")
    a("v_mul_u32_u24 v16, 40, v16")
    a("v_add_u32 v18, v18, v16")
    a("v_add_u32 v18, %d, v18" % WPHI)
    a("v_mov_b32 v19, %d" % ZR)
    a("v_cmp_eq_u32 vcc, v17, v2")
    a("v_cndmask_b32 v14, v19, v18, vcc")
    load_wphi_frags(a)
    a("v_lshlrev_b32 v15, 4, v1")
    a("s_mul_i32 s28, s27, 5120")
    a("s_add_u32 s28, s28, %d" % VFR)
    a("v_add_u32 v15, s28, v15")
    for t in range(5):
        for P in range(2):
            b = VA + (P * 5 + t) * 4
            a("v_cvt_pk_bf16_f32 v%d, v%d, v%d" % (16 + t * 4 + 2 * P, b, b + 1))
            a("v_cvt_pk_bf16_f32 v%d, v%d, v%d" % (16 + t * 4 + 2 * P + 1, b + 2, b + 3))
        a("ds_write_b128 v15, %s offset:%d" % (vr(16 + t * 4), t * 1024))
    a("s_waitcnt lgkmcnt(0)")
    a("s_lshl_b32 s28, s27, 5")
    a("v_add_u32 v15, s28, v3")
    a("v_mul_u32_u24 v15, %d, v15" % PHI_STRIDE)
    a("v_mul_u32_u24 v16, 80, v2")
    a("v_add_u32 v15, v15, v16")
    a("v_add_u32 v15, %d, v15" % PHI)
    for P in range(2):
        phi_stage(a, KA + P * 20, 136 + P * 20, 16)
        for c in range(5):
            a("ds_write_b128 v15, %s offset:%d" % (vr(136 + P * 20 + 4 * c), P * 16 * PHI_STRIDE + 16 * c))
    a("s_waitcnt lgkmcnt(0)")
    a("s_barrier")
    stamp(a, 3)
    a("v_lshrrev_b32 v16, 2, v3")
    a("v_and_b32 v17, 3, v3")
    a("v_lshl_add_u32 v16, v2, 2, v16")
    a("v_mul_u32_u24 v16, %d, v16" % PHI_STRIDE)
    a("v_lshl_add_u32 v16, v17, 3, v16")
    a("s_mul_i32 s28, s27, 80")
    a("s_add_u32 s28, s28, %d" % PHI)
    a("v_add_u32 v16, s28, v16")
    a("v_lshlrev_b32 v17, 4, v1")
    a("s_lshl_b32 s28, s27, 10")
    a("s_add_u32 s28, s28, %d" % VFR)
    a("v_add_u32 v17, s28, v17")
    for q in range(4):
        a("v_mov_b32 v%d, 0x3f803f80" % (20 + q))
    KVA = 96
    for s4 in range(4):
        pf = 24 + (s4 & 1) * 20
        for ft in range(3):
            for h in range(2):
                a("ds_read_b64_tr_b16 %s, v16 offset:%d" % (vr(pf + ft * 4 + 2 * h, 2), (s4 * 32 + h * 16) * PHI_STRIDE + 32 * ft))
        for tt in range(2):
            a("ds_read_b128 %s, v17 offset:%d" % (vr(pf + 12 + tt * 4), s4 * 5120 + tt * 1024))
        a("s_waitcnt lgkmcnt(0)")
        for ft in range(3):
            for tt in range(3):
                d = vr(KVA + (ft * 3 + tt) * 4)
                A_ = vr(pf + 12 + tt * 4) if tt < 2 else vr(20)
                a("%s %s, %s, %s, %s" % (MF, d, A_, vr(pf + ft * 4), "0" if s4 == 0 else d))
    a.bg_off()
    stamp(a, 4)
    a.wait_vm("zf")
    a("v_accvgpr_read_b32 v15, a250")
    a("v_readfirstlane_b32 s28, v15")
    a("s_cmp_ge_u32 s28, 16")
    a("s_cbranch_scc1 L_pz_ok")
    keep = list(a.vm)
    poll(a, "L_pz", 0, 16)
    a.vm = keep
    a.label("L_pz_ok")
    a("v_mul_u32_u24 v15, 640, v2")
    a("v_lshl_add_u32 v15, v3, 2, v15")
    a("s_lshl_b32 s28, s21, 14")
    a("s_mul_i32 s29, s27, 2720")
    a("s_add_u32 s28, s28, s29")
    a("v_cmp_ge_u32 s[32:33], v2, s27")
    a("v_cmp_le_u32 s[34:35], v2, s27")
    a("v_cmp_gt_u32 s[36:37], 8, v3")
    a("s_and_b64 s[38:39], s[32:33], s[36:37]")
    a("s_and_b64 s[40:41], s[34:35], s[36:37]")
    for tt in range(2):
        for ft in range(3):
            msk = (32 if tt == 0 else 34) if ft < 2 else (38 if tt == 0 else 40)
            a("s_mov_b64 exec, s[%d:%d]" % (msk, msk + 1))
            for r in range(4):
                a("buffer_atomic_add_f32 v%d, v15, s[12:15], s28 offen offset:%d" %
                  (KVA + (ft * 3 + tt) * 4 + r, tt * 2560 + r * 160 + ft * 64), tag="atom")
    a("s_lshl_b32 s28, s21, 14")
    a("s_mul_i32 s29, s27, 3360")
    a("s_add_u32 s28, s28, s29")
    for ft in range(3):
        a("s_mov_b64 exec, 0x%x" % (0xffff if ft < 2 else 0xff))
        a("buffer_atomic_add_f32 v%d, v15, s[12:15], s28 offen offset:%d" % (KVA + (ft * 3 + 2) * 4, 3200 + ft * 64), tag="atom")
    a("s_mov_b64 exec, -1")
    stamp(a, 5)
    PQ = 136
    QG = q_groups(a, 0)
    half = len(QG) * 6 // 10
    a.bg = QG[:half]
    a.bg_flush()
    a.wait_vm("atom")
    a("s_barrier")
    signal(a, "L_sc", 32)
    a.bg = QG[half:]
    a.bg_flush()
    a("s_barrier")
    stamp(a, 6)
    phi_stage(a, 176, PQ, 16)
    stamp(a, 7)
    a("s_lshl_b32 s30, s21, 2")
    poll1(a, "L_pc", 32, 16)
    stamp(a, 8)
    a("v_lshlrev_b32 v15, 4, v0")
    a("s_lshl_b32 s28, s21, 14")
    for q in range(4):
        a("buffer_load_dwordx4 %s, v15, s[12:15], s28 offen sc1" % vr(216 + 4 * q), tag="kv")
        a("s_add_u32 s28, s28, 4096")
    phi_stage(a, 196, PQ + 20, 16)
    for q in range(16):
        pass
    a("v_lshlrev_b32 v15, 3, v0")
    a("v_add_u32 v15, %d, v15" % KVB)
    a.wait_vm("kv")
    for q in range(4):
        a("v_cvt_pk_bf16_f32 v%d, v%d, v%d" % (32 + 2 * q, 216 + 4 * q, 217 + 4 * q))
        a("v_cvt_pk_bf16_f32 v%d, v%d, v%d" % (33 + 2 * q, 218 + 4 * q, 219 + 4 * q))
        a("ds_write_b64 v15, %s offset:%d" % (vr(32 + 2 * q, 2), q * 2048))
    a("v_lshrrev_b32 v16, 2, v3")
    a("v_and_b32 v17, 3, v3")
    a("v_mul_u32_u24 v18, 21, v2")
    a("v_add_u32 v19, v18, v17")
    a("v_mul_u32_u24 v19, 80, v19")
    a("v_add_u32 v19, %d, v19" % KVB)
    a("v_mul_u32_u24 v18, 80, v18")
    a("v_add_u32 v18, %d, v18" % (KVB + 1600))
    a("v_mov_b32 v20, %d" % ZR)
    a("v_cmp_eq_u32 vcc, v16, v2")
    a("v_cndmask_b32 v16, v20, v19, vcc")
    a("v_cndmask_b32 v17, v20, v18, vcc")
    a("s_waitcnt lgkmcnt(0)")
    a("s_barrier")
    NUM = 40
    for t in range(6):
        fb = 216 + (t & 1) * 20
        for c in range(5):
            if t < 5:
                a("ds_read_b128 %s, v16 offset:%d" % (vr(fb + 4 * c), 320 * t + 16 * c))
            else:
                a("ds_read_b128 %s, v17 offset:%d" % (vr(fb + 4 * c), 16 * c))
        a("s_waitcnt lgkmcnt(0)")
        for c in range(5):
            for P in range(2):
                d = vr(NUM + (P * 6 + t) * 4)
                a("%s %s, %s, %s, %s" % (MF, d, vr(fb + 4 * c), vr(PQ + P * 20 + 4 * c), "0" if c == 0 else d))
    frag_store_setup(a, WS_OA)
    for P in range(2):
        nb = NUM + P * 24
        dn = nb + 20
        a("v_cvt_pk_bf16_f32 v%d, v%d, v%d" % (dn, dn, dn))
        a("v_lshlrev_b32 v%d, 16, v%d" % (dn, dn))
        a("v_add_f32 v%d, 0x358637bd, v%d" % (dn, dn))
        a("v_cvt_pk_bf16_f32 v%d, v%d, v%d" % (dn, dn, dn))
        a("v_lshlrev_b32 v%d, 16, v%d" % (dn, dn))
        a("v_rcp_f32 v%d, v%d" % (dn, dn))
        op = 100 + P * 12
        for m in range(10):
            a("v_cvt_pk_bf16_f32 v%d, v%d, v%d" % (op + m, nb + 2 * m, nb + 2 * m + 1))
        for m in range(10):
            a("v_lshlrev_b32 v%d, 16, v%d" % (nb + 2 * m, op + m))
            a("v_and_b32 v%d, 0xffff0000, v%d" % (nb + 2 * m + 1, op + m))
        for m in range(20):
            a("v_mul_f32 v%d, v%d, v%d" % (nb + m, nb + m, dn))
        for m in range(10):
            a("v_cvt_pk_bf16_f32 v%d, v%d, v%d" % (op + m, nb + 2 * m, nb + 2 * m + 1))
        store_frag(a, op, P)
    stamp(a, 9)
    a("s_branch L_p2")

    a.label("L_k1_B")
    a.vm = list(vm_snapshot)
    a("s_lshl_b32 s28, s20, 7")
    a("s_sub_u32 s28, s28, 16")
    a("v_add_u32 v14, s28, v3")
    a("v_mul_i32_i24 v14, 1280, v14")
    a("v_lshl_add_u32 v14, v2, 4, v14")
    for q in range(5):
        a("s_add_u32 s28, s87, %d" % (4 * q))
        a("s_cmp_ge_u32 s28, 20")
        a("s_cselect_b32 s29, 20, 0")
        a("s_sub_u32 s28, s28, s29")
        a("s_lshl_b32 s28, s28, 6")
        a("buffer_load_dwordx4 %s, v14, s[4:7], s28 offen" % ar(160 + 4 * q), tag=("xh", q))
    for q in range(40):
        a("v_mov_b32 v%d, 0" % (HA + q))
    srd(a, 32, 78, 79, 1280)
    a("v_lshrrev_b32 v14, 4, v0")
    a("s_lshl_b32 s28, s20, 7")
    a("s_lshl_b32 s29, s21, 4")
    a("s_add_u32 s28, s28, s29")
    a("v_add_u32 v14, s28, v14")
    a("v_mul_u32_u24 v15, 1280, v14")
    a("v_lshl_add_u32 v15, v3, 4, v15")
    a("v_lshlrev_b32 v16, 4, v3")
    for c in range(5):
        a("buffer_load_dwordx4 %s, v15, s[4:7], 0 offen offset:%d" % (vr(20 + 4 * c), 256 * c), tag="gx")
        a("buffer_load_dwordx4 %s, v16, s[32:35], 0 offen offset:%d" % (vr(40 + 4 * c), 256 * c), tag="gx")
    a.wait_vm("gx")
    a("v_mov_b32 v60, 0")
    a("v_mov_b32 v61, 0")
    for m in range(20):
        a("v_lshlrev_b32 v62, 16, v%d" % (20 + m))
        a("v_and_b32 v63, 0xffff0000, v%d" % (20 + m))
        a("v_lshlrev_b32 v64, 16, v%d" % (40 + m))
        a("v_and_b32 v65, 0xffff0000, v%d" % (40 + m))
        a("v_mul_f32 v62, v62, v64")
        a("v_mul_f32 v63, v63, v65")
        a("v_cvt_pk_bf16_f32 v62, v62, v63")
        a("v_lshlrev_b32 v63, 16, v62")
        a("v_and_b32 v62, 0xffff0000, v62")
        a("v_add_f32 v60, v60, v63")
        a("v_add_f32 v61, v61, v62")
    a("v_add_f32 v60, v60, v61")
    for sh in (8, 4, 2, 1):
        a("v_add_f32_dpp v60, v60, v60 row_ror:%d row_mask:0xf bank_mask:0xf" % sh)
    a("v_cvt_pk_bf16_f32 v60, v60, v60")
    a("v_lshlrev_b32 v60, 16, v60")
    a("v_mul_f32 v60, s31, v60")
    a("v_exp_f32 v60, -v60")
    a("v_add_f32 v60, 1.0, v60")
    a("v_rcp_f32 v60, v60")
    a("v_cvt_pk_bf16_f32 v60, v60, v60")
    a("v_lshlrev_b32 v60, 16, v60")
    a("v_lshlrev_b32 v14, 2, v14")
    a("v_cmp_eq_u32 vcc, 0, v3")
    a("s_and_saveexec_b64 s[28:29], vcc")
    a("s_mov_b32 s36, 0x%x" % WS_G)
    a("buffer_store_dword v60, v14, s[12:15], s36 offen sc0 sc1", tag="gst")
    a("s_mov_b64 exec, s[28:29]")
    stamp(a, 10)
    a("v_lshlrev_b32 v14, 2, v2")
    a("v_sub_u32 v14, v3, v14")
    for r in range(4):
        a("v_subrev_u32 v15, %d, v14" % r)
        a("v_and_b32 v16, 1, v15")
        a("v_cmp_eq_u32 vcc, 0, v16")
        a("v_cmp_le_i32 s[28:29], 0, v15")
        a("s_and_b64 s[%d:%d], vcc, s[28:29]" % (32 + 2 * r, 33 + 2 * r))
        a("v_cmp_ge_i32 s[28:29], -2, v15")
        a("s_and_b64 s[%d:%d], vcc, s[28:29]" % (40 + 2 * r, 41 + 2 * r))
    a("s_or_b32 s28, s20, s27")
    a("s_cmp_eq_u32 s28, 0")
    for r in range(4):
        a("s_cselect_b64 s[%d:%d], 0, s[%d:%d]" % (48 + 2 * r, 49 + 2 * r, 40 + 2 * r, 41 + 2 * r))
    a("s_mov_b32 s56, 0xffff0000"); a("s_mov_b32 s57, -1")
    a("s_mov_b32 s58, 0"); a("s_mov_b32 s59, -1")
    a("s_mov_b32 s60, 0"); a("s_mov_b32 s61, 0xffff0000")
    stamp(a, 1)
    k1_gemm(a, 1, 0)
    stamp(a, 2)
    KP = 176; VP = 136; QP = 76
    for P in range(2):
        for t in range(5):
            b = KA + (P * 5 + t) * 4
            a("v_cvt_pk_bf16_f32 v%d, v%d, v%d" % (KP + (P + 1) * 10 + 2 * t, b, b + 1))
            a("v_cvt_pk_bf16_f32 v%d, v%d, v%d" % (KP + (P + 1) * 10 + 2 * t + 1, b + 2, b + 3))
            b = VA + (P * 5 + t) * 4
            a("v_cvt_pk_bf16_f32 v%d, v%d, v%d" % (16 + (P * 5 + t) * 2, b, b + 1))
            a("v_cvt_pk_bf16_f32 v%d, v%d, v%d" % (17 + (P * 5 + t) * 2, b + 2, b + 3))
    for P in range(2):
        for t in range(5):
            a("v_mov_b32 v%d, v%d" % (VP + t * 6 + 2 + 2 * P, 16 + (P * 5 + t) * 2))
            a("v_mov_b32 v%d, v%d" % (VP + t * 6 + 3 + 2 * P, 17 + (P * 5 + t) * 2))
    a("v_lshlrev_b32 v15, 3, v1")
    a("s_mul_i32 s28, s27, 5120")
    a("s_add_u32 s28, s28, %d" % EXC)
    a("v_add_u32 v15, s28, v15")
    for t in range(5):
        a("ds_write_b64 v15, %s offset:%d" % (vr(KP + 20 + 2 * t, 2), t * 512))
        a("ds_write_b64 v15, %s offset:%d" % (vr(VP + t * 6 + 4, 2), 2560 + t * 512))
    a("v_lshlrev_b32 v14, 4, v1")
    a("v_add_u32 v14, %d, v14" % HALO)
    a("s_cmp_eq_u32 s27, 0")
    a("s_cbranch_scc1 L_b_w0")
    a("s_mul_i32 s28, s27, 10240")
    a("s_sub_u32 s28, s28, 10240")
    a("v_add_u32 v96, s28, v14")
    for j in range(10):
        a("ds_write_b128 v96, %s offset:%d" % (vr(HA + 4 * j), j * 1024))
    a.label("L_b_w0")
    a("s_waitcnt lgkmcnt(0)")
    a("s_barrier")
    a("s_cmp_eq_u32 s27, 0")
    a("s_cbranch_scc0 L_b_nw0")
    for ww in range(3):
        for j in range(10):
            a("ds_read_b128 %s, v14 offset:%d" % (vr(96 + 4 * j), ww * 10240 + j * 1024))
        a("s_waitcnt lgkmcnt(0)")
        for q in range(40):
            a("v_add_f32 v%d, v%d, v%d" % (HA + q, HA + q, 96 + q))
    for t in range(5):
        b = HA + t * 4
        a("v_cvt_pk_bf16_f32 v%d, v%d, v%d" % (KP + 2 * t, b, b + 1))
        a("v_cvt_pk_bf16_f32 v%d, v%d, v%d" % (KP + 2 * t + 1, b + 2, b + 3))
        b = HA + 20 + t * 4
        a("v_cvt_pk_bf16_f32 v%d, v%d, v%d" % (VP + t * 6, b, b + 1))
        a("v_cvt_pk_bf16_f32 v%d, v%d, v%d" % (VP + t * 6 + 1, b + 2, b + 3))
    a("s_branch L_b_j")
    a.label("L_b_nw0")
    a("v_subrev_u32 v15, 5120, v15")
    for t in range(5):
        a("ds_read_b64 %s, v15 offset:%d" % (vr(KP + 2 * t, 2), t * 512))
        a("ds_read_b64 %s, v15 offset:%d" % (vr(VP + t * 6, 2), 2560 + t * 512))
    a("s_waitcnt lgkmcnt(0)")
    a.label("L_b_j")
    stamp(a, 5)
    k1_gemm(a, 1, 1)
    for P in range(2):
        for t in range(5):
            b = QA + (P * 5 + t) * 4
            a("v_cvt_pk_bf16_f32 v%d, v%d, v%d" % (QP + P * 10 + 2 * t, b, b + 1))
            a("v_cvt_pk_bf16_f32 v%d, v%d, v%d" % (QP + P * 10 + 2 * t + 1, b + 2, b + 3))
    stamp(a, 6)
    a("v_mov_b32 v14, 0xf149f2ca")
    a("s_mov_b32 s30, 0x%x" % SCALE)
    frag_store_setup(a, WS_OB)
    H = range(4)
    def QM(h): return 96 + h * 4
    def TM(h): return 112 + h * 6
    def SBr(h): return 206 + h * 8
    OACC = 16
    for P in range(2):
        for h in H:
            for q in range(2):
                src = QP + P * 10 + 2 * h + q
                if h == 0:
                    a("v_mov_b32 v%d, v%d" % (QM(h) + q, src))
                else:
                    a("v_cndmask_b32 v%d, 0, v%d, s[%d:%d]" % (QM(h) + q, src, 54 + 2 * h, 55 + 2 * h))
                src = QP + P * 10 + 2 * h + 2 + q
                if h == 3:
                    a("v_mov_b32 v%d, v%d" % (QM(h) + 2 + q, src))
                else:
                    a("v_cndmask_b32 v%d, v%d, 0, s[%d:%d]" % (QM(h) + 2 + q, src, 56 + 2 * h, 57 + 2 * h))
        for h in H:
            a("%s %s, %s, %s, 0" % (MF, vr(SBr(h)), vr(KP + P * 10 + 2 * h), vr(QM(h))))
            a("%s %s, %s, %s, 0" % (MF, vr(SBr(h) + 4), vr(KP + (P + 1) * 10 + 2 * h), vr(QM(h))))
        for rnd in range(2):
            for h in H:
                for m in range(4):
                    a("v_cvt_pk_bf16_f32 v%d, v%d, v%d" % (TM(h) + m, SBr(h) + 2 * m, SBr(h) + 2 * m + 1))
            for h in H:
                for m in range(4):
                    a("v_lshlrev_b32 v%d, 16, v%d" % (SBr(h) + 2 * m, TM(h) + m))
                    a("v_and_b32 v%d, 0xffff0000, v%d" % (SBr(h) + 2 * m + 1, TM(h) + m))
            if rnd == 0:
                for h in H:
                    for m in range(8):
                        a("v_mul_f32 v%d, s30, v%d" % (SBr(h) + m, SBr(h) + m))
        for h in H:
            for r in range(4):
                mp = (48 if P == 0 else 40) + 2 * r
                a("v_cndmask_b32 v%d, v14, v%d, s[%d:%d]" % (SBr(h) + r, SBr(h) + r, mp, mp + 1))
                a("v_cndmask_b32 v%d, v14, v%d, s[%d:%d]" % (SBr(h) + 4 + r, SBr(h) + 4 + r, 32 + 2 * r, 33 + 2 * r))
        for h in H:
            s = SBr(h); mx = TM(h) + 4
            a("v_max3_f32 v%d, v%d, v%d, v%d" % (mx, s, s + 1, s + 2))
            a("v_max3_f32 v%d, v%d, v%d, v%d" % (mx, mx, s + 3, s + 4))
            a("v_max3_f32 v%d, v%d, v%d, v%d" % (mx, mx, s + 5, s + 6))
            a("v_max_f32 v%d, v%d, v%d" % (mx, mx, s + 7))
        def xred(op):
            for sw in ("v_permlane16_swap_b32", "v_permlane32_swap_b32"):
                for h in H:
                    a("v_mov_b32 v%d, v%d" % (TM(h) + 5, TM(h) + 4))
                for h in H:
                    a("%s v%d, v%d" % (sw, TM(h) + 4, TM(h) + 5))
                for h in H:
                    a("%s v%d, v%d, v%d" % (op, TM(h) + 4, TM(h) + 4, TM(h) + 5))
        xred("v_max_f32")
        for h in H:
            a("v_mul_f32 v%d, s31, v%d" % (TM(h) + 4, TM(h) + 4))
        for h in H:
            for m in range(8):
                a("v_fma_f32 v%d, v%d, s31, -v%d" % (SBr(h) + m, SBr(h) + m, TM(h) + 4))
        for h in H:
            for m in range(8):
                a("v_exp_f32 v%d, v%d" % (SBr(h) + m, SBr(h) + m))
        for h in H:
            s = SBr(h); sm = TM(h) + 4
            a("v_add_f32 v%d, v%d, v%d" % (sm, s, s + 1))
            for m in range(2, 8):
                a("v_add_f32 v%d, v%d, v%d" % (sm, sm, s + m))
        xred("v_add_f32")
        for h in H:
            a("v_rcp_f32 v%d, v%d" % (TM(h) + 4, TM(h) + 4))
        for h in H:
            for m in range(8):
                a("v_mul_f32 v%d, v%d, v%d" % (SBr(h) + m, SBr(h) + m, TM(h) + 4))
        for h in H:
            for m in range(4):
                a("v_cvt_pk_bf16_f32 v%d, v%d, v%d" % (TM(h) + m, SBr(h) + 2 * m, SBr(h) + 2 * m + 1))
        for h in H:
            for tt in range(2):
                t = h + tt
                a("%s %s, %s, %s, 0" % (MF, vr(OACC + (h * 2 + tt) * 4), vr(VP + t * 6 + 2 * P), vr(TM(h))))
        OP = 48 + P * 10
        for t in range(5):
            if t == 0:
                src = OACC + 0
            elif t == 4:
                src = OACC + (3 * 2 + 1) * 4
            else:
                src = OACC + (t * 2) * 4
                oth = OACC + ((t - 1) * 2 + 1) * 4
                for r in range(4):
                    a("v_cndmask_b32 v%d, v%d, v%d, s[%d:%d]" % (src + r, oth + r, src + r, 54 + 2 * t, 55 + 2 * t))
            a("v_cvt_pk_bf16_f32 v%d, v%d, v%d" % (OP + 2 * t, src, src + 1))
            a("v_cvt_pk_bf16_f32 v%d, v%d, v%d" % (OP + 2 * t + 1, src + 2, src + 3))
        store_frag(a, OP, P)
    stamp(a, 9)

NB2 = 8
def p2_dma(a, u):
    buf = u % NB2
    br = 1 if u < 5 else 0
    a("s_add_u32 s28, s27, %d" % (4 * (u % 5)))
    a("s_mul_i32 s29, s28, 13")
    a("s_lshr_b32 s29, s29, 6")
    a("s_mul_i32 s36, s29, 5")
    a("s_sub_u32 s28, s28, s36")
    a("s_mul_i32 s29, s29, 160")
    a("s_cmp_ge_u32 s28, 3")
    a("s_cselect_b32 s36, 80, 0")
    a("s_cselect_b32 s38, 3, 0")
    a("s_add_u32 s29, s29, s36")
    a("s_sub_u32 s36, s28, s38")
    a("s_mul_i32 s36, s36, %d" % (32 if br else 8))
    a("s_add_u32 s29, s29, s36")
    a("s_mul_i32 s29, s29, 1280")
    a("s_add_u32 s29, s29, s23")
    srdn = 8 if br else 40
    pat = 5 if br else 216
    a("s_cmp_eq_u32 s28, 2")
    a("s_cbranch_scc1 L_p2y%d" % u)
    keep = list(a.vm)
    for i5 in range(5):
        a("s_add_u32 m0, s26, %d" % (buf * 20480 + i5 * 1024))
        a("buffer_load_dwordx4 v%d, s[%d:%d], s29 offen lds" % (pat + i5, srdn, srdn + 3), tag=("dma2", u))
    a("s_branch L_p2j%d" % u)
    a.label("L_p2y%d" % u)
    a.vm = keep
    for i5 in range(5):
        a("s_add_u32 m0, s26, %d" % (buf * 20480 + i5 * 1024))
        a("buffer_load_dwordx4 v%d, s[%d:%d], s29 offen lds" % (pat + 5 + i5, srdn, srdn + 3), tag=("dma2", u))
    a.label("L_p2j%d" % u)

def p2_reads(kk):
    u = kk >> 2; sub = kk & 3; buf = u % NB2
    img = buf * 20480 + sub * 5120
    base = 20 + img // 61440
    img -= (img // 61440) * 61440
    out = []
    for t in range(5):
        f = 24 + (kk % 3) * 20 + t * 4
        for h in range(2):
            out.append("ds_read_b64_tr_b16 %s, v%d offset:%d" % (vr(f + 2 * h, 2), base, img + h * 2560 + 32 * t))
    return out

def gen_k2(a):
    a.label("L_p2")
    a.vm = ["st"] * 8
    a("s_lshl_b32 s37, s20, 2")
    a("s_lshl_b32 s28, s3, 6")
    a("s_sub_u32 s37, s37, s28")
    a("s_add_u32 s37, s37, 64")
    a("s_and_b32 s28, s2, 7")
    a("s_lshr_b32 s29, s2, 3")
    a("s_lshr_b32 s20, s28, 1")
    a("s_lshl_b32 s20, s20, 3")
    a("s_lshr_b32 s30, s29, 2")
    a("s_add_u32 s20, s20, s30")
    a("s_and_b32 s21, s28, 1")
    a("s_lshl_b32 s21, s21, 2")
    a("s_and_b32 s30, s29, 3")
    a("s_add_u32 s21, s21, s30")
    a("s_mul_i32 s23, s21, 160")
    a("v_lshlrev_b32 v4, 4, v1")
    for i5 in range(5):
        dma_row_decode(a, 24, 25, i5, 26)
        a("v_lshrrev_b32 v26, 4, v24")
        a("v_bfe_u32 v27, v24, 2, 2")
        a("v_and_b32 v28, 3, v24")
        a("v_lshlrev_b32 v25, 4, v25")
        a("v_mul_u32_u24 v31, 80, v26")
        a("v_mul_u32_u24 v30, 1280, v24")
        a("v_add_u32 v%d, v25, v30" % (5 + i5))
        a("v_lshl_add_u32 v29, v27, 2, v28")
        a("v_add_u32 v30, v31, v29")
        a("v_mul_u32_u24 v30, 1280, v30")
        a("v_add_u32 v%d, v25, v30" % (10 + i5))
        a("v_mul_u32_u24 v29, 20, v27")
        a("v_add_u32 v29, v29, v28")
        a("v_lshl_add_u32 v30, v26, 2, v29")
        a("v_mul_u32_u24 v30, 1280, v30")
        a("v_add_u32 v%d, v25, v30" % (216 + i5))
        a("v_add_u32 v30, v31, v29")
        a("v_mul_u32_u24 v30, 1280, v30")
        a("v_add_u32 v%d, v25, v30" % (221 + i5))
    a.wait_vm_all()
    a("s_barrier")
    a("s_cmp_lg_u32 s27, 0")
    a("s_cbranch_scc1 L_p2_ns")
    a("v_mov_b32 v24, 1")
    a("s_mov_b64 exec, 1")
    a("buffer_atomic_add v24, off, s[16:19], s37 offset:64")
    a.vm.pop()
    a("s_mov_b64 exec, -1")
    a.label("L_p2_ns")
    srd(a, 8, 76, 77, 819200)
    srd(a, 40, 70, 71, 819200)
    srd(a, 32, 80, 81, 2621440)
    a("s_lshl_b32 s22, s20, 2")
    a("s_add_u32 s22, s22, s27")
    a("s_mul_i32 s22, s22, 20480")
    for u in range(4):
        p2_dma(a, u)
    a("s_lshr_b32 s30, s20, 1")
    a("s_lshl_b32 s30, s30, 2")
    stamp(a, 11)
    poll1(a, "L_prb", 64, 8, 23, False)
    stamp(a, 12)
    def oloads(br):
        a("s_add_u32 s28, s22, 0x%x" % (WS_OB if br else WS_OA))
        for ks in range(20):
            a("buffer_load_dwordx4 %s, v4, s[12:15], s28 offen" % ar((0 if br else 80) + ks * 4), tag=("x", (0 if br else 20) + ks))
            a("s_add_u32 s28, s28, 1024")
    oloads(1)
    a("s_lshl_b32 s28, s20, 6")
    a("s_lshl_b32 s29, s27, 4")
    a("s_add_u32 s28, s28, s29")
    a("v_add_u32 v16, s28, v3")
    a("v_lshlrev_b32 v17, 2, v16")
    a("s_mov_b32 s29, 0x%x" % WS_G)
    a("buffer_load_dword v18, v17, s[12:15], s29 offen", tag="g")
    a("v_lshrrev_b32 v24, 2, v3")
    a("v_and_b32 v25, 3, v3")
    a("v_lshl_add_u32 v24, v2, 2, v24")
    a("v_mul_u32_u24 v24, 160, v24")
    a("v_lshl_add_u32 v20, v25, 3, v24")
    a("v_add_u32 v21, 61440, v20")
    a("v_add_u32 v22, 61440, v21")
    ACB = 96; ACA = 116
    a.wait_vm(("dma2", 0))
    a("s_barrier")
    p2_dma(a, 4)
    for r in p2_reads(0) + p2_reads(1): a(r)
    for kk in range(40):
        a("s_waitcnt lgkmcnt(%d)" % (10 if kk < 39 else 0))
        if kk == 12:
            stamp(a, 13)
            poll1(a, "L_pra", 128, 8, 23, False)
            oloads(0)
        a.wait_vm(("x", kk))
        nx = kk + 2
        rd = []
        if nx < 40:
            if nx % 4 == 0:
                un = nx // 4
                a.wait_vm(("dma2", un)); a("s_barrier")
                if un + 4 < 10:
                    p2_dma(a, un + 4)
            rd = p2_reads(nx)
        acc0 = ACB if kk < 20 else ACA
        mf = ["%s %s, %s, %s, %s" % (MF, vr(acc0 + t * 4), vr(24 + (kk % 3) * 20 + t * 4), ar(kk * 4), "0" if kk % 20 == 0 else vr(acc0 + t * 4)) for t in range(5)]
        interleave(a, mf, rd)
    stamp(a, 14)
    a.wait_vm("g")
    a("v_mul_u32_u24 v16, 1280, v16")
    a("v_lshl_add_u32 v16, v2, 3, v16")
    a("v_sub_f32 v19, 1.0, v18")
    a("v_cvt_pk_bf16_f32 v19, v19, v19")
    a("v_lshlrev_b32 v19, 16, v19")
    for t in range(5):
        A0 = ACA + t * 4; B0 = ACB + t * 4
        for X in (A0, B0):
            a("v_cvt_pk_bf16_f32 v28, v%d, v%d" % (X, X + 1))
            a("v_cvt_pk_bf16_f32 v29, v%d, v%d" % (X + 2, X + 3))
            a("v_lshlrev_b32 v%d, 16, v28" % X)
            a("v_and_b32 v%d, 0xffff0000, v28" % (X + 1))
            a("v_lshlrev_b32 v%d, 16, v29" % (X + 2))
            a("v_and_b32 v%d, 0xffff0000, v29" % (X + 3))
            mul = 18 if X == A0 else 19
            for r in range(4):
                a("v_mul_f32 v%d, v%d, v%d" % (X + r, X + r, mul))
            a("v_cvt_pk_bf16_f32 v28, v%d, v%d" % (X, X + 1))
            a("v_cvt_pk_bf16_f32 v29, v%d, v%d" % (X + 2, X + 3))
            a("v_lshlrev_b32 v%d, 16, v28" % X)
            a("v_and_b32 v%d, 0xffff0000, v28" % (X + 1))
            a("v_lshlrev_b32 v%d, 16, v29" % (X + 2))
            a("v_and_b32 v%d, 0xffff0000, v29" % (X + 3))
        for r in range(4):
            a("v_add_f32 v%d, v%d, v%d" % (A0 + r, A0 + r, B0 + r))
        a("v_cvt_pk_bf16_f32 v%d, v%d, v%d" % (B0, A0, A0 + 1))
        a("v_cvt_pk_bf16_f32 v%d, v%d, v%d" % (B0 + 1, A0 + 2, A0 + 3))
        a("buffer_store_dwordx2 %s, v16, s[32:35], s23 offen offset:%d" % (vr(B0, 2), t * 32))
    stamp(a, 15)
    a.label("L_k1_end")
    a("s_endpgm")

HEADER = open("cdna_kernels/%s.s.ref" % NAME).read().split("; Override launch")[0]

def main(path):
    a = Asm()
    a.raw(HEADER.rstrip())
    a.raw("; @launch grid=(256,1,1) block=(256,1,1) lds=163840")
    a.raw('.amdgcn_target "amdgcn-amd-amdhsa--gfx950"\n.text')
    gen_k1(a)
    gen_k2(a)
    a.raw('.section .rodata,"a"')
    for k in (KN,):
        a.raw(""".p2align 6
.amdhsa_kernel %s
  .amdhsa_next_free_vgpr 512
  .amdhsa_next_free_sgpr 102
  .amdhsa_accum_offset 256
  .amdhsa_group_segment_fixed_size 0
  .amdhsa_kernarg_size 88
  .amdhsa_user_sgpr_count 2
  .amdhsa_user_sgpr_kernarg_segment_ptr 1
  .amdhsa_system_sgpr_workgroup_id_x 1
.end_amdhsa_kernel""" % k)
    open(path, "w").write(a.text())
    print("instructions:", a.n_ins)

if __name__ == "__main__":
    if len(sys.argv) > 2 and sys.argv[2] == "stamps":
        STAMPS = True
    main(sys.argv[1] if len(sys.argv) > 1 else "cdna_kernels/%s.s" % NAME)
```

```python
import sys
sys.path.insert(0, "tools")
from emit import Asm

NAME = "gated_mix__linear_kernel_hedgehog__sliding_local_dilated__prompt"
KN = NAME + "_kernel"
WS_KVT = 0
WS_G = 0x20000
WS_OA = 0x40000
WS_OB = 0x40000 + 0x280000
L2E = 0x3fb8aa3b
SCALE = 0x3e64f92e
MF = "v_mfma_f32_16x16x32_bf16"

NB1 = 5
XR = NB1 * 20480
SMALL = XR + 49152
WPHI = SMALL
ZR = SMALL + 3328
KVB = 0
VFR = 81920
PHI = 102400
PHI_STRIDE = 352
HALO = 81920
EXC = 81920 + 30720

STAMPS = False
WS_ST = 0x800000
def stamp(a, n, kern=0):
    if not STAMPS: return
    a("s_memtime s[90:91]")
    a("s_waitcnt lgkmcnt(0)")
    a("v_accvgpr_write_b32 a200, s90")
    a("s_lshl_b32 s92, s2, 2")
    a("s_add_u32 s92, s92, s27")
    a("s_lshl_b32 s92, s92, 8")
    a("s_add_u32 s92, s92, 0x%x" % (WS_ST + kern * 0x20000 + n * 4))
    a("buffer_store_dword a200, off, s[12:15], s92")
    a("s_memrealtime s[90:91]")
    a("s_waitcnt lgkmcnt(0)")
    a("v_accvgpr_write_b32 a201, s90")
    a("buffer_store_dword a201, off, s[12:15], s92 offset:64")
    if n == 0:
        a("v_accvgpr_write_b32 a202, s94")
        a("buffer_store_dword a202, off, s[12:15], s92 offset:128")


def vr(b, n=4):
    return "v[%d:%d]" % (b, b + n - 1)
def ar(b, n=4):
    return "a[%d:%d]" % (b, b + n - 1)

def srd(a, d, lo, hi, size):
    a("s_mov_b32 s%d, s%d" % (d, lo))
    a("s_mov_b32 s%d, s%d" % (d + 1, hi))
    a("s_mov_b32 s%d, 0x%x" % (d + 2, size))
    a("s_mov_b32 s%d, 0x00020000" % (d + 3))

def load_kernargs(a):
    a("s_load_dwordx16 s[64:79], s[0:1], 0")
    a("s_load_dwordx4 s[80:83], s[0:1], 64")
    a("s_load_dwordx2 s[84:85], s[0:1], 80")

def dma_row_decode(a, vdst_p, vdst_cc, i5, vt):
    a("v_add_u32 v%d, %d, v1" % (vt, i5 * 64))
    a("v_mul_u32_u24 v%d, 0x199a, v%d" % (vdst_p, vt))
    a("v_lshrrev_b32 v%d, 16, v%d" % (vdst_p, vdst_p))
    a("v_mul_u32_u24 v%d, 10, v%d" % (vdst_cc, vdst_p))
    a("v_sub_u32 v%d, v%d, v%d" % (vdst_cc, vt, vdst_cc))

def poll(a, name, off, target, vt=15):
    a("s_mov_b32 s29, 0x20000")
    a.label(name)
    a("buffer_load_dword v%d, off, s[16:19], s30 offset:%d sc1" % (vt, off))
    a.wait_vm_all()
    a("v_readfirstlane_b32 s28, v%d" % vt)
    a("s_cmp_ge_u32 s28, %d" % target)
    a("s_cbranch_scc1 %s_done" % name)
    a("s_sleep 4")
    a("s_sub_u32 s29, s29, 1")
    a("s_cmp_lg_u32 s29, 0")
    a("s_cbranch_scc1 %s" % name)
    a.label(name + "_done")

def poll1(a, name, off, target, vt=15, inv=False):
    keep = list(a.vm)
    a("s_cmp_lg_u32 s27, 0")
    a("s_cbranch_scc1 %s_w" % name)
    poll(a, name, off, target, vt)
    a.vm = keep
    a.label(name + "_w")
    a("s_barrier")
    if inv:
        a("buffer_inv sc1")

def signal(a, name, off):
    a("s_cmp_lg_u32 s27, 0")
    a("s_cbranch_scc1 %s" % name)
    a("v_mov_b32 v14, 1")
    a("s_lshl_b32 s28, s21, 2")
    a("s_mov_b64 exec, 1")
    a("buffer_atomic_add v14, off, s[16:19], s28 offset:%d" % off)
    a.vm.pop()
    a("s_mov_b64 exec, -1")
    a.label(name)

def interleave(a, mf, rd, rate=2):
    k = 0; m = len(rd)
    for i, x in enumerate(mf):
        a(x)
        for _ in range(rate):
            if k < m:
                a(rd[k]); k += 1
    while k < m:
        a(rd[k]); k += 1

SEQ = [("P", u) for u in range(10)] + [("Q", u) for u in range(5)]
def ubuf(n):
    return n % 5 if n < 10 else (n - 10) % 4
STEPS = []
for n, (kind, u) in enumerate(SEQ):
    if kind == "P":
        for s in range(2): STEPS.append((n, "P", 2 * u + s, s))
    else:
        for s in range(4): STEPS.append((n, "Q", 4 * u + s, s))
KA = 96; VA = 136; QA = 96; HA = 216; WFA = 180
XP2 = 1; XA0 = 14

def k1_dma(a, n, st="s28"):
    kind, u = SEQ[n]
    buf = ubuf(n)
    if kind == "P":
        a("s_add_u32 %s, s86, %d" % (st, u))
        a("s_cmp_ge_u32 %s, 10" % st)
        a("s_cselect_b32 s101, 10, 0")
        a("s_sub_u32 %s, %s, s101" % (st, st))
        a("s_mul_i32 %s, %s, 245760" % (st, st))
        a("s_add_u32 %s, %s, s24" % (st, st))
    else:
        a("s_add_u32 %s, s87, %d" % (st, 4 * u))
        a("s_cmp_ge_u32 %s, 20" % st)
        a("s_cselect_b32 s101, 20, 0")
        a("s_sub_u32 %s, %s, s101" % (st, st))
        a("s_mul_i32 %s, %s, 122880" % (st, st))
        a("s_add_u32 %s, %s, s25" % (st, st))
    for i5 in range(5):
        a("s_add_u32 m0, s26, %d" % (buf * 20480 + i5 * 1024))
        a("buffer_load_dwordx4 v%d, s[8:11], %s offen lds" % (5 + i5, st), tag=("dma", n))

def q_groups(a, br):
    G = []
    G.append([(lambda: a.wait_vm(("dma", 10)), None), ("s_barrier", None)])
    rr = k1_reads(20, br) + k1_reads(21, br)
    for i in range(0, len(rr), 4):
        G.append([(r, None) for r in rr[i:i + 4]])
    for si in range(20, 40):
        g = [("s_waitcnt lgkmcnt(%d)" % (10 if si < 39 else 0), None)]
        rd = []
        if si + 2 < 40:
            n2 = STEPS[si + 2][0]
            if n2 != STEPS[si + 1][0]:
                g.append(((lambda n2=n2: a.wait_vm(("dma", n2))), None))
                g.append(("s_barrier", None))
                if n2 == 12:
                    g.append(((lambda: k1_dma(a, 14, "s100")), None))
            rd = k1_reads(si + 2, br)
        mf = k1_mfmas(si, br)
        k = 0
        for x in mf:
            g.append((x, None))
            for _ in range(2):
                if k < len(rd):
                    g.append((rd[k], None)); k += 1
            G.append(g); g = []
    return G

def tr_base(img, blk):
    grp = img // 61440
    return (12 if blk else 10) + grp, img - grp * 61440

def fset(si, br=1):
    if STEPS[si][1] == "P":
        return 16 + (si & 1) * 40
    return (16, 36, 56)[si % 3] if br == 1 else (216, 236, 76)[si % 3]
def qacc(br):
    return 96 if br == 1 else 176

def k1_reads(si, br):
    n, kind, ks, sub = STEPS[si]
    buf = ubuf(n)
    fs = fset(si, br)
    out = []
    nt = 10 if kind == "P" else 5
    for j in range(nt):
        t = j % 5
        if kind == "P":
            seg = j // 5
            img = buf * 20480 + (sub * 2 + seg) * 5120
            blk = (seg == 0 and br == 0)
        else:
            img = buf * 20480 + sub * 5120
            blk = (br == 0)
        base, off = tr_base(img, blk)
        co = 8 * t if blk else 32 * t
        for h in range(2):
            out.append("ds_read_b64_tr_b16 %s, v%d offset:%d" % (vr(fs + j * 4 + 2 * h, 2), base, off + h * 2560 + co))
    return out

def k1_mfmas(si, br=1):
    n, kind, ks, sub = STEPS[si]
    fs = fset(si, br)
    out = []
    nt = 10 if kind == "P" else 5
    for j in range(nt):
        t = j % 5
        f = vr(fs + j * 4)
        for P in range(2):
            x = ar((ks * 2 + P) * 4)
            if kind == "Q":
                acc = vr(qacc(br) + (P * 5 + t) * 4)
                out.append("%s %s, %s, %s, %s" % (MF, acc, f, x, "0" if ks == 0 else acc))
            elif j < 5:
                acc = vr(KA + (P * 5 + t) * 4)
                out.append("%s %s, %s, %s, %s" % (MF, acc, f, x, "0" if ks == 0 else acc))
            else:
                acc = vr(VA + (P * 5 + t) * 4)
                out.append("%s %s, %s, %s, %s" % (MF, acc, x, f, "0" if ks == 0 else acc))
    return out

UPRE = 4

def xdma(a, c):
    a("s_add_u32 s29, s86, %d" % c)
    a("s_cmp_ge_u32 s29, 10")
    a("s_cselect_b32 s101, 10, 0")
    a("s_sub_u32 s29, s29, s101")
    a("s_lshl_b32 s29, s29, 7")
    for j in range(4):
        a("s_add_u32 m0, s23, %d" % ((c % 3) * 4096 + j * 1024))
        a("s_add_u32 s28, s29, %d" % (j * 10240))
        a("buffer_load_dwordx4 v%d, s[4:7], s28 offen lds" % (4 if j % 2 == 0 else XP2), tag=("xc", c))

def xreads(c):
    out = []
    for p in range(2):
        for P in range(2):
            out.append("ds_read_b128 %s, v%d offset:%d" % (ar(((2 * c + p) * 2 + P) * 4), XA0 + p, (c % 3) * 4096 + P * 2048))
    return out

def wo_prefetch(a):
    a("s_lshr_b32 s28, s2, 3")
    a("s_cmp_lt_u32 s28, 16")
    a("s_cselect_b32 s96, s70, s76")
    a("s_cselect_b32 s97, s71, s77")
    a("s_mov_b32 s98, 819200")
    a("s_mov_b32 s99, 0x00020000")
    a("s_and_b32 s28, s28, 15")
    a("s_mul_i32 s28, s28, 40")
    a("s_mul_i32 s29, s27, 10")
    a("s_add_u32 s28, s28, s29")
    a("s_mul_i32 s28, s28, 1280")
    a("s_and_b32 s29, s2, 1")
    a("s_mul_i32 s29, s29, 640")
    a("s_add_u32 s28, s28, s29")
    a("v_lshlrev_b32 v14, 4, v1")
    a("s_mov_b32 s100, -1")
    a("s_mov_b32 s101, 0xff")
    a("s_mov_b64 exec, s[100:101]")
    for r in range(10):
        a("buffer_load_dwordx4 a[240:243], v14, s[96:99], s28 offen", tag="pf")
        a("s_add_u32 s28, s28, 1280")
    a("s_mov_b64 exec, -1")

def k1_gemm(a, br, phase, first_hook=None):
    if phase == 0:
        a("v_lshrrev_b32 v16, 1, v3")
        a("v_xor_b32 v16, v16, v2")
        a("v_lshlrev_b32 v17, 7, v3")
        a("v_add_u32 v17, s23, v17")
        a("v_lshl_add_u32 v14, v16, 4, v17")
        a("v_xor_b32 v15, 64, v14")
        a("v_xor_b32 v1, 64, v4")
        a.wait_vm(("xc", 0))
        for r in xreads(0):
            a(r)
        a.wait_vm(("dma", 0), "lgkmcnt(0)")
        a("s_barrier")
        xdma(a, 3)
        if first_hook: first_hook()
        lo, hi = 0, 20
    else:
        a.wait_vm(("dma", 10))
        a("s_barrier")
        for r in k1_reads(20, br) + k1_reads(21, br):
            a(r)
        for si in range(20, 40):
            n = STEPS[si][0]
            a("s_waitcnt lgkmcnt(%d)" % (10 if si < 39 else 0))
            rd = []
            if si + 2 < 40:
                n2 = STEPS[si + 2][0]
                if n2 != STEPS[si + 1][0]:
                    a.wait_vm(("dma", n2))
                    a("s_barrier")
                    if n2 == 12:
                        k1_dma(a, 14)
                rd = k1_reads(si + 2, br)
            interleave(a, k1_mfmas(si), rd)
        return
    for r in k1_reads(lo, br):
        a(r)
    pend_x = None
    for si in range(lo, hi):
        n, kind, ks, sub = STEPS[si]
        a("s_waitcnt lgkmcnt(0)")
        if pend_x is not None:
            if pend_x + 3 < 10:
                xdma(a, pend_x + 3)
            pend_x = None
        rd = []
        if si + 1 < hi:
            n2, kind2, ks2, _ = STEPS[si + 1]
            if kind2 == "P" and ks2 % 2 == 0:
                a.wait_vm(("xc", ks2 // 2))
                rd += xreads(ks2 // 2)
                pend_x = ks2 // 2
            if n2 != n:
                a.wait_vm(("dma", n2))
                a("s_barrier")
                if n2 <= 9:
                    k1_dma(a, n2 + 3)
                elif n2 == 11:
                    k1_dma(a, 14)
            rd += k1_reads(si + 1, br)
        interleave(a, k1_mfmas(si), rd)
        if kind == "P" and br == 1:
            a("s_cmp_eq_u32 s27, %d" % (ks & 3))
            a("s_cbranch_scc0 L_h%d" % ks)
            a.wait_vm(("xh", ks >> 2))
            fs = 16 + (si & 1) * 40
            for j in range(10):
                f = vr(fs + j * 4)
                x = ar(160 + (ks >> 2) * 4)
                acc = vr(HA + j * 4)
                if j < 5:
                    a("%s %s, %s, %s, %s" % (MF, acc, f, x, acc))
                else:
                    a("%s %s, %s, %s, %s" % (MF, acc, x, f, acc))
            a.label("L_h%d" % ks)
    if phase == 0:
        a("s_barrier")
        k1_dma(a, 13)
        a("v_and_b32 v1, 63, v0")
        wo_prefetch(a)

def load_wphi_frags(a):
    for tp in range(5):
        for c in range(3):
            f = WFA + (tp * 3 + c) * 4
            a("ds_read_b64_tr_b16 %s, v14 offset:%d" % (ar(f, 2), (8 * c) * 40 + 8 * tp))
            if c < 2:
                a("ds_read_b64_tr_b16 %s, v14 offset:%d" % (ar(f + 2, 2), (8 * c + 4) * 40 + 8 * tp))
            else:
                a("v_accvgpr_write_b32 a%d, 0" % (f + 2))
                a("v_accvgpr_write_b32 a%d, 0" % (f + 3))

def phi_stage(a, acc, out, T):
    kp = T; pk = T + 12; em = T + 32; tmp = T + 52
    for t in range(5):
        a("v_cvt_pk_bf16_f32 v%d, v%d, v%d" % (kp + 2 * t, acc + 4 * t, acc + 4 * t + 1))
        a("v_cvt_pk_bf16_f32 v%d, v%d, v%d" % (kp + 2 * t + 1, acc + 4 * t + 2, acc + 4 * t + 3))
    a("v_mov_b32 v%d, 0" % (kp + 10))
    a("v_mov_b32 v%d, 0" % (kp + 11))
    for c in range(3):
        for tp in range(5):
            d = vr(pk + 4 * tp)
            a("%s %s, %s, %s, %s" % (MF, d, ar(WFA + (tp * 3 + c) * 4), vr(kp + 4 * c), "0" if c == 0 else d))
    for m in range(10):
        a("v_cvt_pk_bf16_f32 v%d, v%d, v%d" % (kp + m, pk + 2 * m, pk + 2 * m + 1))
    for m in range(10):
        a("v_lshlrev_b32 v%d, 16, v%d" % (pk + 2 * m, kp + m))
        a("v_and_b32 v%d, 0xffff0000, v%d" % (pk + 2 * m + 1, kp + m))
    mx = tmp; mn = tmp + 1; s1 = tmp + 2; s2 = tmp + 3
    a("v_max3_f32 v%d, v%d, v%d, v%d" % (mx, pk, pk + 1, pk + 2))
    a("v_min3_f32 v%d, v%d, v%d, v%d" % (mn, pk, pk + 1, pk + 2))
    for m in range(3, 19, 2):
        a("v_max3_f32 v%d, v%d, v%d, v%d" % (mx, mx, pk + m, pk + m + 1))
        a("v_min3_f32 v%d, v%d, v%d, v%d" % (mn, mn, pk + m, pk + m + 1))
    a("v_max_f32 v%d, v%d, v%d" % (mx, mx, pk + 19))
    a("v_min_f32 v%d, v%d, v%d" % (mn, mn, pk + 19))
    a("v_mul_f32 v%d, s31, v%d" % (mx, mx))
    a("v_mul_f32 v%d, s31, v%d" % (mn, mn))
    a("v_mov_b32 v%d, v%d" % (tmp + 5, mx))
    a("v_mov_b32 v%d, v%d" % (tmp + 4, mx))
    a("v_mov_b32 v%d, v%d" % (tmp + 7, mn))
    a("v_mov_b32 v%d, v%d" % (tmp + 6, mn))
    for m in range(10):
        a("v_pk_fma_f32 %s, %s, s[62:63], %s neg_lo:[1,0,0] neg_hi:[1,0,0]" % (vr(em + 2 * m, 2), vr(pk + 2 * m, 2), vr(tmp + 6, 2)))
        a("v_pk_fma_f32 %s, %s, s[62:63], %s neg_lo:[0,0,1] neg_hi:[0,0,1]" % (vr(pk + 2 * m, 2), vr(pk + 2 * m, 2), vr(tmp + 4, 2)))
    for m in range(20):
        a("v_exp_f32 v%d, v%d" % (pk + m, pk + m))
        a("v_exp_f32 v%d, v%d" % (em + m, em + m))
    a("v_pk_add_f32 %s, %s, %s" % (vr(tmp + 4, 2), vr(pk, 2), vr(pk + 2, 2)))
    a("v_pk_add_f32 %s, %s, %s" % (vr(tmp + 6, 2), vr(em, 2), vr(em + 2, 2)))
    for m in range(2, 10):
        a("v_pk_add_f32 %s, %s, %s" % (vr(tmp + 4, 2), vr(tmp + 4, 2), vr(pk + 2 * m, 2)))
        a("v_pk_add_f32 %s, %s, %s" % (vr(tmp + 6, 2), vr(tmp + 6, 2), vr(em + 2 * m, 2)))
    a("v_add_f32 v%d, v%d, v%d" % (s1, tmp + 4, tmp + 5))
    a("v_add_f32 v%d, v%d, v%d" % (s2, tmp + 6, tmp + 7))
    a("v_rcp_f32 v%d, v%d" % (tmp + 4, s1))
    a("v_rcp_f32 v%d, v%d" % (tmp + 6, s2))
    a("v_mov_b32 v%d, v%d" % (tmp + 5, tmp + 4))
    a("v_mov_b32 v%d, v%d" % (tmp + 7, tmp + 6))
    for m in range(10):
        a("v_pk_mul_f32 %s, %s, %s" % (vr(pk + 2 * m, 2), vr(pk + 2 * m, 2), vr(tmp + 4, 2)))
        a("v_pk_mul_f32 %s, %s, %s" % (vr(em + 2 * m, 2), vr(em + 2 * m, 2), vr(tmp + 6, 2)))
    for m in range(10):
        a("v_cvt_pk_bf16_f32 v%d, v%d, v%d" % (out + m, pk + 2 * m, pk + 2 * m + 1))
        a("v_cvt_pk_bf16_f32 v%d, v%d, v%d" % (out + 10 + m, em + 2 * m, em + 2 * m + 1))

def store_frag(a, op, P):
    a("buffer_store_dwordx4 %s, v15, s[12:15], s22 offen offset:%d sc0 sc1" % (vr(op), 0), tag="st")
    a("buffer_store_dwordx4 %s, v15, s[12:15], s22 offen offset:%d sc0 sc1" % (vr(op + 4), 1024), tag="st")
    a("buffer_store_dwordx2 %s, v15, s[12:15], s23 offen sc0 sc1" % (vr(op + 8, 2)), tag="st")
    if P == 0:
        a("s_add_u32 s22, s22, 20480")
        a("s_add_u32 s23, s23, 20480")

def frag_store_setup(a, wsoff):
    a("s_lshl_b32 s22, s20, 3")
    a("s_lshl_b32 s28, s27, 1")
    a("s_add_u32 s22, s22, s28")
    a("s_mul_i32 s22, s22, 20480")
    a("s_add_u32 s22, s22, 0x%x" % wsoff)
    a("s_lshr_b32 s28, s21, 1")
    a("s_mul_i32 s28, s28, 5120")
    a("s_add_u32 s22, s22, s28")
    a("s_add_u32 s23, s22, 2048")
    a("s_and_b32 s28, s21, 1")
    a("s_mul_i32 s29, s28, 3072")
    a("s_add_u32 s22, s22, s29")
    a("s_lshl_b32 s28, s28, 3")
    a("s_add_u32 s23, s23, s28")
    a("v_lshlrev_b32 v15, 4, v1")

def gen_k1(a):
    a.raw(".globl %s\n.p2align 8\n.type %s,@function\n%s:" % (KN, KN, KN))
    a("s_cmp_ge_u32 s2, 256")
    a("s_cbranch_scc1 L_k1_end")
    a("s_memrealtime s[94:95]")
    load_kernargs(a)
    a("s_and_b32 s28, s2, 7")
    a("s_lshr_b32 s29, s2, 3")
    a("s_lshr_b32 s20, s28, 2")
    a("s_lshl_b32 s20, s20, 3")
    a("s_lshr_b32 s30, s29, 2")
    a("s_add_u32 s20, s20, s30")
    a("s_and_b32 s21, s28, 3")
    a("s_lshl_b32 s21, s21, 2")
    a("s_and_b32 s30, s29, 3")
    a("s_add_u32 s21, s21, s30")
    a("s_lshr_b32 s3, s21, 3")
    a("s_and_b32 s21, s21, 7")
    a("v_and_b32 v1, 63, v0")
    a("v_lshrrev_b32 v2, 6, v0")
    a("v_readfirstlane_b32 s27, v2")
    a("v_lshrrev_b32 v2, 4, v1")
    a("v_and_b32 v3, 15, v1")
    a("s_lshl_b32 s28, s20, 7")
    a("s_lshl_b32 s29, s27, 5")
    a("s_add_u32 s28, s28, s29")
    a("v_lshrrev_b32 v14, 3, v1")
    a("v_add_u32 v4, s28, v14")
    a("v_mul_u32_u24 v4, 1280, v4")
    a("v_lshrrev_b32 v14, 1, v14")
    a("v_and_b32 v15, 7, v1")
    a("v_xor_b32 v14, v14, v15")
    a("v_lshl_add_u32 v4, v14, 4, v4")
    a("s_lshr_b32 s28, s27, 1")
    a("s_mul_i32 s24, s28, 122880")
    a("s_and_b32 s28, s27, 1")
    a("s_add_u32 s28, s28, 1")
    a("s_mul_i32 s28, s28, 1280")
    a("s_add_u32 s24, s24, s28")
    a("s_mul_i32 s28, s21, 160")
    a("s_add_u32 s24, s24, s28")
    a("s_mov_b32 s25, s28")
    a("s_lshr_b32 s29, s2, 3")
    a("s_lshr_b32 s86, s29, 2")
    a("s_and_b32 s29, s29, 3")
    a("s_lshl_b32 s29, s29, 1")
    a("s_add_u32 s86, s86, s29")
    a("s_cmp_ge_u32 s86, 10")
    a("s_cselect_b32 s29, 10, 0")
    a("s_sub_u32 s86, s86, s29")
    a("s_lshl_b32 s87, s86, 1")
    a("s_add_u32 s87, s87, s27")
    a("s_cmp_ge_u32 s87, 20")
    a("s_cselect_b32 s29, 20, 0")
    a("s_sub_u32 s87, s87, s29")
    a("s_mul_i32 s26, s27, 5120")
    for i5 in range(5):
        dma_row_decode(a, 14, 15, i5, 16)
        a("v_lshrrev_b32 v16, 4, v14")
        a("v_bfe_u32 v17, v14, 2, 2")
        a("v_and_b32 v18, 3, v14")
        a("v_lshlrev_b32 v17, 3, v17")
        a("v_lshl_add_u32 v17, v16, 2, v17")
        a("v_add_u32 v17, v17, v18")
        a("v_mul_u32_u24 v17, 3840, v17")
        a("v_lshl_add_u32 v%d, v15, 4, v17" % (5 + i5))
    a("s_mul_i32 s23, s27, 12288")
    a("s_add_u32 s23, s23, %d" % XR)
    a("v_xor_b32 v240, 64, v4")
    a("s_waitcnt lgkmcnt(0)")
    srd(a, 4, 64, 65, 2621440)
    a("s_cmp_eq_u32 s3, 0")
    a("s_cselect_b32 s8, s66, s74")
    a("s_cselect_b32 s9, s67, s75")
    a("s_mov_b32 s10, 2457600")
    a("s_mov_b32 s11, 0x00020000")
    srd(a, 12, 84, 85, 0x10000000)
    srd(a, 16, 82, 83, 256)
    a("s_or_b32 s28, s3, s27")
    a("s_cmp_lg_u32 s28, 0")
    a("s_cbranch_scc1 L_nz")
    a("v_mov_b32 v16, 0"); a("v_mov_b32 v17, 0"); a("v_mov_b32 v18, 0"); a("v_mov_b32 v19, 0")
    a("v_lshlrev_b32 v15, 4, v1")
    a("s_lshl_b32 s28, s21, 14")
    a("s_lshl_b32 s29, s20, 10")
    a("s_add_u32 s28, s28, s29")
    a("buffer_store_dwordx4 v[16:19], v15, s[12:15], s28 offen sc0 sc1")
    a.vm.pop()
    a.label("L_nz")
    a("v_mov_b32 v241, v1")
    a("v_mov_b32 v1, v240")
    xdma(a, 0)
    k1_dma(a, 0)
    xdma(a, 1)
    k1_dma(a, 1)
    xdma(a, 2)
    k1_dma(a, 2)
    k1_dma(a, 3)
    a("v_mov_b32 v1, v241")
    stamp(a, 0)
    a("v_lshrrev_b32 v16, 2, v3")
    a("v_and_b32 v17, 3, v3")
    a("v_lshl_add_u32 v16, v2, 2, v16")
    a("v_mul_u32_u24 v16, 160, v16")
    a("v_lshl_add_u32 v10, v17, 3, v16")
    a("v_add_u32 v11, 61440, v10")
    a("v_mul_u32_u24 v17, 40, v17")
    a("v_add_u32 v12, v16, v17")
    a("v_add_u32 v13, 61440, v12")
    a("s_mov_b32 s31, 0x%x" % L2E)
    a("s_mov_b32 s62, s31")
    a("s_mov_b32 s63, s31")
    a("s_cmp_eq_u32 s3, 0")
    a("s_cbranch_scc0 L_k1_B")
    vm_snapshot = list(a.vm)

    srd(a, 32, 68, 69, 25600)
    a("s_mul_i32 s28, s21, 3200")
    a("v_lshlrev_b32 v15, 4, v0")
    a("buffer_load_dwordx4 v[16:19], v15, s[32:35], s28 offen", tag="wphi")
    a("v_mov_b32 v20, 0"); a("v_mov_b32 v21, 0"); a("v_mov_b32 v22, 0"); a("v_mov_b32 v23, 0")
    a("v_add_u32 v24, %d, v15" % ZR)
    a("v_cmp_gt_u32 vcc, 128, v0")
    a("s_and_saveexec_b64 s[28:29], vcc")
    a("ds_write_b128 v24, v[20:23]")
    a("s_mov_b64 exec, s[28:29]")
    a.wait_vm("wphi")
    a("v_add_u32 v24, %d, v15" % WPHI)
    a("v_cmp_gt_u32 vcc, 200, v0")
    a("s_and_saveexec_b64 s[28:29], vcc")
    a("ds_write_b128 v24, v[16:19]")
    a("s_mov_b64 exec, s[28:29]")
    stamp(a, 1)
    def hookZ():
        a("v_mov_b32 v16, v14")
        signal(a, "L_sz", 192)
        a("v_mov_b32 v14, v16")
    k1_gemm(a, 0, 0, hookZ)
    stamp(a, 2)
    a("s_lshl_b32 s30, s21, 2")
    a("buffer_load_dword a250, off, s[16:19], s30 offset:192 sc1", tag="zf")
    a("v_lshrrev_b32 v16, 2, v3")
    a("v_and_b32 v17, 3, v3")
    a("v_mul_u32_u24 v18, 800, v2")
    a("v_mul_u32_u24 v16, 40, v16")
    a("v_add_u32 v18, v18, v16")
    a("v_add_u32 v18, %d, v18" % WPHI)
    a("v_mov_b32 v19, %d" % ZR)
    a("v_cmp_eq_u32 vcc, v17, v2")
    a("v_cndmask_b32 v14, v19, v18, vcc")
    load_wphi_frags(a)
    a("v_lshlrev_b32 v15, 4, v1")
    a("s_mul_i32 s28, s27, 5120")
    a("s_add_u32 s28, s28, %d" % VFR)
    a("v_add_u32 v15, s28, v15")
    for t in range(5):
        for P in range(2):
            b = VA + (P * 5 + t) * 4
            a("v_cvt_pk_bf16_f32 v%d, v%d, v%d" % (16 + t * 4 + 2 * P, b, b + 1))
            a("v_cvt_pk_bf16_f32 v%d, v%d, v%d" % (16 + t * 4 + 2 * P + 1, b + 2, b + 3))
        a("ds_write_b128 v15, %s offset:%d" % (vr(16 + t * 4), t * 1024))
    a("s_waitcnt lgkmcnt(0)")
    a("s_lshl_b32 s28, s27, 5")
    a("v_add_u32 v15, s28, v3")
    a("v_mul_u32_u24 v15, %d, v15" % PHI_STRIDE)
    a("v_mul_u32_u24 v16, 80, v2")
    a("v_add_u32 v15, v15, v16")
    a("v_add_u32 v15, %d, v15" % PHI)
    for P in range(2):
        phi_stage(a, KA + P * 20, 136 + P * 20, 16)
        for c in range(5):
            a("ds_write_b128 v15, %s offset:%d" % (vr(136 + P * 20 + 4 * c), P * 16 * PHI_STRIDE + 16 * c))
    a("s_waitcnt lgkmcnt(0)")
    a("s_barrier")
    stamp(a, 3)
    a("v_lshrrev_b32 v16, 2, v3")
    a("v_and_b32 v17, 3, v3")
    a("v_lshl_add_u32 v16, v2, 2, v16")
    a("v_mul_u32_u24 v16, %d, v16" % PHI_STRIDE)
    a("v_lshl_add_u32 v16, v17, 3, v16")
    a("s_mul_i32 s28, s27, 80")
    a("s_add_u32 s28, s28, %d" % PHI)
    a("v_add_u32 v16, s28, v16")
    a("v_lshlrev_b32 v17, 4, v1")
    a("s_lshl_b32 s28, s27, 10")
    a("s_add_u32 s28, s28, %d" % VFR)
    a("v_add_u32 v17, s28, v17")
    for q in range(4):
        a("v_mov_b32 v%d, 0x3f803f80" % (20 + q))
    KVA = 96
    for s4 in range(4):
        pf = 24 + (s4 & 1) * 20
        for ft in range(3):
            for h in range(2):
                a("ds_read_b64_tr_b16 %s, v16 offset:%d" % (vr(pf + ft * 4 + 2 * h, 2), (s4 * 32 + h * 16) * PHI_STRIDE + 32 * ft))
        for tt in range(2):
            a("ds_read_b128 %s, v17 offset:%d" % (vr(pf + 12 + tt * 4), s4 * 5120 + tt * 1024))
        a("s_waitcnt lgkmcnt(0)")
        for ft in range(3):
            for tt in range(3):
                d = vr(KVA + (ft * 3 + tt) * 4)
                A_ = vr(pf + 12 + tt * 4) if tt < 2 else vr(20)
                a("%s %s, %s, %s, %s" % (MF, d, A_, vr(pf + ft * 4), "0" if s4 == 0 else d))
    a.bg_off()
    stamp(a, 4)
    a.wait_vm("zf")
    a("v_accvgpr_read_b32 v15, a250")
    a("v_readfirstlane_b32 s28, v15")
    a("s_cmp_ge_u32 s28, 16")
    a("s_cbranch_scc1 L_pz_ok")
    keep = list(a.vm)
    poll(a, "L_pz", 192, 16)
    a.vm = keep
    a.label("L_pz_ok")
    a("v_mul_u32_u24 v15, 640, v2")
    a("v_lshl_add_u32 v15, v3, 2, v15")
    a("s_lshl_b32 s28, s21, 14")
    a("s_mul_i32 s29, s27, 2720")
    a("s_add_u32 s28, s28, s29")
    a("v_cmp_ge_u32 s[32:33], v2, s27")
    a("v_cmp_le_u32 s[34:35], v2, s27")
    a("v_cmp_gt_u32 s[36:37], 8, v3")
    a("s_and_b64 s[38:39], s[32:33], s[36:37]")
    a("s_and_b64 s[40:41], s[34:35], s[36:37]")
    for tt in range(2):
        for ft in range(3):
            msk = (32 if tt == 0 else 34) if ft < 2 else (38 if tt == 0 else 40)
            a("s_mov_b64 exec, s[%d:%d]" % (msk, msk + 1))
            for r in range(4):
                a("buffer_atomic_add_f32 v%d, v15, s[12:15], s28 offen offset:%d" %
                  (KVA + (ft * 3 + tt) * 4 + r, tt * 2560 + r * 160 + ft * 64), tag="atom")
    a("s_lshl_b32 s28, s21, 14")
    a("s_mul_i32 s29, s27, 3360")
    a("s_add_u32 s28, s28, s29")
    for ft in range(3):
        a("s_mov_b64 exec, 0x%x" % (0xffff if ft < 2 else 0xff))
        a("buffer_atomic_add_f32 v%d, v15, s[12:15], s28 offen offset:%d" % (KVA + (ft * 3 + 2) * 4, 3200 + ft * 64), tag="atom")
    a("s_mov_b64 exec, -1")
    stamp(a, 5)
    PQ = 136
    QG = q_groups(a, 0)
    half = len(QG) * 6 // 10
    a.bg = QG[:half]
    a.bg_flush()
    a.wait_vm("atom")
    a("s_barrier")
    signal(a, "L_sc", 224)
    a.bg = QG[half:]
    a.bg_flush()
    a("s_barrier")
    stamp(a, 6)
    phi_stage(a, 176, PQ, 16)
    stamp(a, 7)
    a("s_lshl_b32 s30, s21, 2")
    poll1(a, "L_pc", 224, 16)
    stamp(a, 8)
    a("v_lshlrev_b32 v15, 4, v0")
    a("s_lshl_b32 s28, s21, 14")
    for q in range(4):
        a("buffer_load_dwordx4 %s, v15, s[12:15], s28 offen sc1" % vr(216 + 4 * q), tag="kv")
        a("s_add_u32 s28, s28, 4096")
    phi_stage(a, 196, PQ + 20, 16)
    for q in range(16):
        pass
    a("v_lshlrev_b32 v15, 3, v0")
    a("v_add_u32 v15, %d, v15" % KVB)
    a.wait_vm("kv")
    for q in range(4):
        a("v_cvt_pk_bf16_f32 v%d, v%d, v%d" % (32 + 2 * q, 216 + 4 * q, 217 + 4 * q))
        a("v_cvt_pk_bf16_f32 v%d, v%d, v%d" % (33 + 2 * q, 218 + 4 * q, 219 + 4 * q))
        a("ds_write_b64 v15, %s offset:%d" % (vr(32 + 2 * q, 2), q * 2048))
    a("v_lshrrev_b32 v16, 2, v3")
    a("v_and_b32 v17, 3, v3")
    a("v_mul_u32_u24 v18, 21, v2")
    a("v_add_u32 v19, v18, v17")
    a("v_mul_u32_u24 v19, 80, v19")
    a("v_add_u32 v19, %d, v19" % KVB)
    a("v_mul_u32_u24 v18, 80, v18")
    a("v_add_u32 v18, %d, v18" % (KVB + 1600))
    a("v_mov_b32 v20, %d" % ZR)
    a("v_cmp_eq_u32 vcc, v16, v2")
    a("v_cndmask_b32 v16, v20, v19, vcc")
    a("v_cndmask_b32 v17, v20, v18, vcc")
    a("s_waitcnt lgkmcnt(0)")
    a("s_barrier")
    NUM = 40
    for t in range(6):
        fb = 216 + (t & 1) * 20
        for c in range(5):
            if t < 5:
                a("ds_read_b128 %s, v16 offset:%d" % (vr(fb + 4 * c), 320 * t + 16 * c))
            else:
                a("ds_read_b128 %s, v17 offset:%d" % (vr(fb + 4 * c), 16 * c))
        a("s_waitcnt lgkmcnt(0)")
        for c in range(5):
            for P in range(2):
                d = vr(NUM + (P * 6 + t) * 4)
                a("%s %s, %s, %s, %s" % (MF, d, vr(fb + 4 * c), vr(PQ + P * 20 + 4 * c), "0" if c == 0 else d))
    frag_store_setup(a, WS_OA)
    for P in range(2):
        nb = NUM + P * 24
        dn = nb + 20
        a("v_cvt_pk_bf16_f32 v%d, v%d, v%d" % (dn, dn, dn))
        a("v_lshlrev_b32 v%d, 16, v%d" % (dn, dn))
        a("v_add_f32 v%d, 0x358637bd, v%d" % (dn, dn))
        a("v_cvt_pk_bf16_f32 v%d, v%d, v%d" % (dn, dn, dn))
        a("v_lshlrev_b32 v%d, 16, v%d" % (dn, dn))
        a("v_rcp_f32 v%d, v%d" % (dn, dn))
        op = 100 + P * 12
        for m in range(10):
            a("v_cvt_pk_bf16_f32 v%d, v%d, v%d" % (op + m, nb + 2 * m, nb + 2 * m + 1))
        for m in range(10):
            a("v_lshlrev_b32 v%d, 16, v%d" % (nb + 2 * m, op + m))
            a("v_and_b32 v%d, 0xffff0000, v%d" % (nb + 2 * m + 1, op + m))
        for m in range(20):
            a("v_mul_f32 v%d, v%d, v%d" % (nb + m, nb + m, dn))
        for m in range(10):
            a("v_cvt_pk_bf16_f32 v%d, v%d, v%d" % (op + m, nb + 2 * m, nb + 2 * m + 1))
        store_frag(a, op, P)
    stamp(a, 9)
    a("s_branch L_p2")

    a.label("L_k1_B")
    a.vm = list(vm_snapshot)
    a("s_lshl_b32 s28, s20, 7")
    a("s_sub_u32 s28, s28, 16")
    a("v_add_u32 v14, s28, v3")
    a("v_mul_i32_i24 v14, 1280, v14")
    a("v_lshl_add_u32 v14, v2, 4, v14")
    for q in range(5):
        a("s_add_u32 s28, s87, %d" % (4 * q))
        a("s_cmp_ge_u32 s28, 20")
        a("s_cselect_b32 s29, 20, 0")
        a("s_sub_u32 s28, s28, s29")
        a("s_lshl_b32 s28, s28, 6")
        a("buffer_load_dwordx4 %s, v14, s[4:7], s28 offen" % ar(160 + 4 * q), tag=("xh", q))
    for q in range(40):
        a("v_mov_b32 v%d, 0" % (HA + q))
    srd(a, 32, 78, 79, 1280)
    a("v_lshrrev_b32 v14, 4, v0")
    a("s_lshl_b32 s28, s20, 7")
    a("s_lshl_b32 s29, s21, 4")
    a("s_add_u32 s28, s28, s29")
    a("v_add_u32 v14, s28, v14")
    a("v_mul_u32_u24 v15, 1280, v14")
    a("v_lshl_add_u32 v15, v3, 4, v15")
    a("v_lshlrev_b32 v16, 4, v3")
    for c in range(5):
        a("buffer_load_dwordx4 %s, v15, s[4:7], 0 offen offset:%d" % (vr(20 + 4 * c), 256 * c), tag="gx")
        a("buffer_load_dwordx4 %s, v16, s[32:35], 0 offen offset:%d" % (vr(40 + 4 * c), 256 * c), tag="gx")
    a.wait_vm("gx")
    a("v_mov_b32 v60, 0")
    a("v_mov_b32 v61, 0")
    for m in range(20):
        a("v_lshlrev_b32 v62, 16, v%d" % (20 + m))
        a("v_and_b32 v63, 0xffff0000, v%d" % (20 + m))
        a("v_lshlrev_b32 v64, 16, v%d" % (40 + m))
        a("v_and_b32 v65, 0xffff0000, v%d" % (40 + m))
        a("v_mul_f32 v62, v62, v64")
        a("v_mul_f32 v63, v63, v65")
        a("v_cvt_pk_bf16_f32 v62, v62, v63")
        a("v_lshlrev_b32 v63, 16, v62")
        a("v_and_b32 v62, 0xffff0000, v62")
        a("v_add_f32 v60, v60, v63")
        a("v_add_f32 v61, v61, v62")
    a("v_add_f32 v60, v60, v61")
    for sh in (8, 4, 2, 1):
        a("v_add_f32_dpp v60, v60, v60 row_ror:%d row_mask:0xf bank_mask:0xf" % sh)
    a("v_cvt_pk_bf16_f32 v60, v60, v60")
    a("v_lshlrev_b32 v60, 16, v60")
    a("v_mul_f32 v60, s31, v60")
    a("v_exp_f32 v60, -v60")
    a("v_add_f32 v60, 1.0, v60")
    a("v_rcp_f32 v60, v60")
    a("v_cvt_pk_bf16_f32 v60, v60, v60")
    a("v_lshlrev_b32 v60, 16, v60")
    a("v_lshlrev_b32 v14, 2, v14")
    a("v_cmp_eq_u32 vcc, 0, v3")
    a("s_and_saveexec_b64 s[28:29], vcc")
    a("s_mov_b32 s36, 0x%x" % WS_G)
    a("buffer_store_dword v60, v14, s[12:15], s36 offen sc0 sc1", tag="gst")
    a("s_mov_b64 exec, s[28:29]")
    stamp(a, 10)
    a("v_lshlrev_b32 v14, 2, v2")
    a("v_sub_u32 v14, v3, v14")
    for r in range(4):
        a("v_subrev_u32 v15, %d, v14" % r)
        a("v_and_b32 v16, 1, v15")
        a("v_cmp_eq_u32 vcc, 0, v16")
        a("v_cmp_le_i32 s[28:29], 0, v15")
        a("s_and_b64 s[%d:%d], vcc, s[28:29]" % (32 + 2 * r, 33 + 2 * r))
        a("v_cmp_ge_i32 s[28:29], -2, v15")
        a("s_and_b64 s[%d:%d], vcc, s[28:29]" % (40 + 2 * r, 41 + 2 * r))
    a("s_or_b32 s28, s20, s27")
    a("s_cmp_eq_u32 s28, 0")
    for r in range(4):
        a("s_cselect_b64 s[%d:%d], 0, s[%d:%d]" % (48 + 2 * r, 49 + 2 * r, 40 + 2 * r, 41 + 2 * r))
    a("s_mov_b32 s56, 0xffff0000"); a("s_mov_b32 s57, -1")
    a("s_mov_b32 s58, 0"); a("s_mov_b32 s59, -1")
    a("s_mov_b32 s60, 0"); a("s_mov_b32 s61, 0xffff0000")
    stamp(a, 1)
    k1_gemm(a, 1, 0)
    stamp(a, 2)
    KP = 176; VP = 136; QP = 76
    for P in range(2):
        for t in range(5):
            b = KA + (P * 5 + t) * 4
            a("v_cvt_pk_bf16_f32 v%d, v%d, v%d" % (KP + (P + 1) * 10 + 2 * t, b, b + 1))
            a("v_cvt_pk_bf16_f32 v%d, v%d, v%d" % (KP + (P + 1) * 10 + 2 * t + 1, b + 2, b + 3))
            b = VA + (P * 5 + t) * 4
            a("v_cvt_pk_bf16_f32 v%d, v%d, v%d" % (16 + (P * 5 + t) * 2, b, b + 1))
            a("v_cvt_pk_bf16_f32 v%d, v%d, v%d" % (17 + (P * 5 + t) * 2, b + 2, b + 3))
    for P in range(2):
        for t in range(5):
            a("v_mov_b32 v%d, v%d" % (VP + t * 6 + 2 + 2 * P, 16 + (P * 5 + t) * 2))
            a("v_mov_b32 v%d, v%d" % (VP + t * 6 + 3 + 2 * P, 17 + (P * 5 + t) * 2))
    a("v_lshlrev_b32 v15, 3, v1")
    a("s_mul_i32 s28, s27, 5120")
    a("s_add_u32 s28, s28, %d" % EXC)
    a("v_add_u32 v15, s28, v15")
    for t in range(5):
        a("ds_write_b64 v15, %s offset:%d" % (vr(KP + 20 + 2 * t, 2), t * 512))
        a("ds_write_b64 v15, %s offset:%d" % (vr(VP + t * 6 + 4, 2), 2560 + t * 512))
    a("v_lshlrev_b32 v14, 4, v1")
    a("v_add_u32 v14, %d, v14" % HALO)
    a("s_cmp_eq_u32 s27, 0")
    a("s_cbranch_scc1 L_b_w0")
    a("s_mul_i32 s28, s27, 10240")
    a("s_sub_u32 s28, s28, 10240")
    a("v_add_u32 v96, s28, v14")
    for j in range(10):
        a("ds_write_b128 v96, %s offset:%d" % (vr(HA + 4 * j), j * 1024))
    a.label("L_b_w0")
    a("s_waitcnt lgkmcnt(0)")
    a("s_barrier")
    a("s_cmp_eq_u32 s27, 0")
    a("s_cbranch_scc0 L_b_nw0")
    for ww in range(3):
        for j in range(10):
            a("ds_read_b128 %s, v14 offset:%d" % (vr(96 + 4 * j), ww * 10240 + j * 1024))
        a("s_waitcnt lgkmcnt(0)")
        for q in range(40):
            a("v_add_f32 v%d, v%d, v%d" % (HA + q, HA + q, 96 + q))
    for t in range(5):
        b = HA + t * 4
        a("v_cvt_pk_bf16_f32 v%d, v%d, v%d" % (KP + 2 * t, b, b + 1))
        a("v_cvt_pk_bf16_f32 v%d, v%d, v%d" % (KP + 2 * t + 1, b + 2, b + 3))
        b = HA + 20 + t * 4
        a("v_cvt_pk_bf16_f32 v%d, v%d, v%d" % (VP + t * 6, b, b + 1))
        a("v_cvt_pk_bf16_f32 v%d, v%d, v%d" % (VP + t * 6 + 1, b + 2, b + 3))
    a("s_branch L_b_j")
    a.label("L_b_nw0")
    a("v_subrev_u32 v15, 5120, v15")
    for t in range(5):
        a("ds_read_b64 %s, v15 offset:%d" % (vr(KP + 2 * t, 2), t * 512))
        a("ds_read_b64 %s, v15 offset:%d" % (vr(VP + t * 6, 2), 2560 + t * 512))
    a("s_waitcnt lgkmcnt(0)")
    a.label("L_b_j")
    stamp(a, 5)
    k1_gemm(a, 1, 1)
    for P in range(2):
        for t in range(5):
            b = QA + (P * 5 + t) * 4
            a("v_cvt_pk_bf16_f32 v%d, v%d, v%d" % (QP + P * 10 + 2 * t, b, b + 1))
            a("v_cvt_pk_bf16_f32 v%d, v%d, v%d" % (QP + P * 10 + 2 * t + 1, b + 2, b + 3))
    stamp(a, 6)
    a("v_mov_b32 v14, 0xf149f2ca")
    a("s_mov_b32 s30, 0x%x" % SCALE)
    frag_store_setup(a, WS_OB)
    H = range(4)
    def QM(h): return 96 + h * 4
    def TM(h): return 112 + h * 6
    def SBr(h): return 206 + h * 8
    OACC = 16
    for P in range(2):
        for h in H:
            for q in range(2):
                src = QP + P * 10 + 2 * h + q
                if h == 0:
                    a("v_mov_b32 v%d, v%d" % (QM(h) + q, src))
                else:
                    a("v_cndmask_b32 v%d, 0, v%d, s[%d:%d]" % (QM(h) + q, src, 54 + 2 * h, 55 + 2 * h))
                src = QP + P * 10 + 2 * h + 2 + q
                if h == 3:
                    a("v_mov_b32 v%d, v%d" % (QM(h) + 2 + q, src))
                else:
                    a("v_cndmask_b32 v%d, v%d, 0, s[%d:%d]" % (QM(h) + 2 + q, src, 56 + 2 * h, 57 + 2 * h))
        for h in H:
            a("%s %s, %s, %s, 0" % (MF, vr(SBr(h)), vr(KP + P * 10 + 2 * h), vr(QM(h))))
            a("%s %s, %s, %s, 0" % (MF, vr(SBr(h) + 4), vr(KP + (P + 1) * 10 + 2 * h), vr(QM(h))))
        for rnd in range(2):
            for h in H:
                for m in range(4):
                    a("v_cvt_pk_bf16_f32 v%d, v%d, v%d" % (TM(h) + m, SBr(h) + 2 * m, SBr(h) + 2 * m + 1))
            for h in H:
                for m in range(4):
                    a("v_lshlrev_b32 v%d, 16, v%d" % (SBr(h) + 2 * m, TM(h) + m))
                    a("v_and_b32 v%d, 0xffff0000, v%d" % (SBr(h) + 2 * m + 1, TM(h) + m))
            if rnd == 0:
                for h in H:
                    for m in range(8):
                        a("v_mul_f32 v%d, s30, v%d" % (SBr(h) + m, SBr(h) + m))
        for h in H:
            for r in range(4):
                mp = (48 if P == 0 else 40) + 2 * r
                a("v_cndmask_b32 v%d, v14, v%d, s[%d:%d]" % (SBr(h) + r, SBr(h) + r, mp, mp + 1))
                a("v_cndmask_b32 v%d, v14, v%d, s[%d:%d]" % (SBr(h) + 4 + r, SBr(h) + 4 + r, 32 + 2 * r, 33 + 2 * r))
        for h in H:
            s = SBr(h); mx = TM(h) + 4
            a("v_max3_f32 v%d, v%d, v%d, v%d" % (mx, s, s + 1, s + 2))
            a("v_max3_f32 v%d, v%d, v%d, v%d" % (mx, mx, s + 3, s + 4))
            a("v_max3_f32 v%d, v%d, v%d, v%d" % (mx, mx, s + 5, s + 6))
            a("v_max_f32 v%d, v%d, v%d" % (mx, mx, s + 7))
        def xred(op):
            for sw in ("v_permlane16_swap_b32", "v_permlane32_swap_b32"):
                for h in H:
                    a("v_mov_b32 v%d, v%d" % (TM(h) + 5, TM(h) + 4))
                for h in H:
                    a("%s v%d, v%d" % (sw, TM(h) + 4, TM(h) + 5))
                for h in H:
                    a("%s v%d, v%d, v%d" % (op, TM(h) + 4, TM(h) + 4, TM(h) + 5))
        xred("v_max_f32")
        for h in H:
            a("v_mul_f32 v%d, s31, v%d" % (TM(h) + 4, TM(h) + 4))
        for h in H:
            for m in range(8):
                a("v_fma_f32 v%d, v%d, s31, -v%d" % (SBr(h) + m, SBr(h) + m, TM(h) + 4))
        for h in H:
            for m in range(8):
                a("v_exp_f32 v%d, v%d" % (SBr(h) + m, SBr(h) + m))
        for h in H:
            s = SBr(h); sm = TM(h) + 4
            a("v_add_f32 v%d, v%d, v%d" % (sm, s, s + 1))
            for m in range(2, 8):
                a("v_add_f32 v%d, v%d, v%d" % (sm, sm, s + m))
        xred("v_add_f32")
        for h in H:
            a("v_rcp_f32 v%d, v%d" % (TM(h) + 4, TM(h) + 4))
        for h in H:
            for m in range(8):
                a("v_mul_f32 v%d, v%d, v%d" % (SBr(h) + m, SBr(h) + m, TM(h) + 4))
        for h in H:
            for m in range(4):
                a("v_cvt_pk_bf16_f32 v%d, v%d, v%d" % (TM(h) + m, SBr(h) + 2 * m, SBr(h) + 2 * m + 1))
        for h in H:
            for tt in range(2):
                t = h + tt
                a("%s %s, %s, %s, 0" % (MF, vr(OACC + (h * 2 + tt) * 4), vr(VP + t * 6 + 2 * P), vr(TM(h))))
        OP = 48 + P * 10
        for t in range(5):
            if t == 0:
                src = OACC + 0
            elif t == 4:
                src = OACC + (3 * 2 + 1) * 4
            else:
                src = OACC + (t * 2) * 4
                oth = OACC + ((t - 1) * 2 + 1) * 4
                for r in range(4):
                    a("v_cndmask_b32 v%d, v%d, v%d, s[%d:%d]" % (src + r, oth + r, src + r, 54 + 2 * t, 55 + 2 * t))
            a("v_cvt_pk_bf16_f32 v%d, v%d, v%d" % (OP + 2 * t, src, src + 1))
            a("v_cvt_pk_bf16_f32 v%d, v%d, v%d" % (OP + 2 * t + 1, src + 2, src + 3))
        store_frag(a, OP, P)
    stamp(a, 9)

NB2 = 8
def p2_dma(a, u):
    buf = u % NB2
    br = 1 if u < 5 else 0
    a("s_add_u32 s28, s27, %d" % (4 * (u % 5)))
    a("s_mul_i32 s29, s28, 13")
    a("s_lshr_b32 s29, s29, 6")
    a("s_mul_i32 s36, s29, 5")
    a("s_sub_u32 s28, s28, s36")
    a("s_mul_i32 s29, s29, 160")
    a("s_cmp_ge_u32 s28, 3")
    a("s_cselect_b32 s36, 80, 0")
    a("s_cselect_b32 s38, 3, 0")
    a("s_add_u32 s29, s29, s36")
    a("s_sub_u32 s36, s28, s38")
    a("s_mul_i32 s36, s36, %d" % (32 if br else 8))
    a("s_add_u32 s29, s29, s36")
    a("s_mul_i32 s29, s29, 1280")
    a("s_add_u32 s29, s29, s23")
    srdn = 8 if br else 40
    pat = 5 if br else 216
    a("s_cmp_eq_u32 s28, 2")
    a("s_cbranch_scc1 L_p2y%d" % u)
    keep = list(a.vm)
    for i5 in range(5):
        a("s_add_u32 m0, s26, %d" % (buf * 20480 + i5 * 1024))
        a("buffer_load_dwordx4 v%d, s[%d:%d], s29 offen lds" % (pat + i5, srdn, srdn + 3), tag=("dma2", u))
    a("s_branch L_p2j%d" % u)
    a.label("L_p2y%d" % u)
    a.vm = keep
    for i5 in range(5):
        a("s_add_u32 m0, s26, %d" % (buf * 20480 + i5 * 1024))
        a("buffer_load_dwordx4 v%d, s[%d:%d], s29 offen lds" % (pat + 5 + i5, srdn, srdn + 3), tag=("dma2", u))
    a.label("L_p2j%d" % u)

def p2_reads(kk):
    u = kk >> 2; sub = kk & 3; buf = u % NB2
    img = buf * 20480 + sub * 5120
    base = 20 + img // 61440
    img -= (img // 61440) * 61440
    out = []
    for t in range(5):
        f = 24 + (kk % 3) * 20 + t * 4
        for h in range(2):
            out.append("ds_read_b64_tr_b16 %s, v%d offset:%d" % (vr(f + 2 * h, 2), base, img + h * 2560 + 32 * t))
    return out

def gen_k2(a):
    a.label("L_p2")
    a.vm = ["st"] * 8
    a("s_lshl_b32 s37, s20, 2")
    a("s_lshl_b32 s28, s3, 6")
    a("s_sub_u32 s37, s37, s28")
    a("s_add_u32 s37, s37, 64")
    a("s_and_b32 s28, s2, 7")
    a("s_lshr_b32 s29, s2, 3")
    a("s_lshr_b32 s20, s28, 1")
    a("s_lshl_b32 s20, s20, 3")
    a("s_lshr_b32 s30, s29, 2")
    a("s_add_u32 s20, s20, s30")
    a("s_and_b32 s21, s28, 1")
    a("s_lshl_b32 s21, s21, 2")
    a("s_and_b32 s30, s29, 3")
    a("s_add_u32 s21, s21, s30")
    a("s_mul_i32 s23, s21, 160")
    a("v_lshlrev_b32 v4, 4, v1")
    for i5 in range(5):
        dma_row_decode(a, 24, 25, i5, 26)
        a("v_lshrrev_b32 v26, 4, v24")
        a("v_bfe_u32 v27, v24, 2, 2")
        a("v_and_b32 v28, 3, v24")
        a("v_lshlrev_b32 v25, 4, v25")
        a("v_mul_u32_u24 v31, 80, v26")
        a("v_mul_u32_u24 v30, 1280, v24")
        a("v_add_u32 v%d, v25, v30" % (5 + i5))
        a("v_lshl_add_u32 v29, v27, 2, v28")
        a("v_add_u32 v30, v31, v29")
        a("v_mul_u32_u24 v30, 1280, v30")
        a("v_add_u32 v%d, v25, v30" % (10 + i5))
        a("v_mul_u32_u24 v29, 20, v27")
        a("v_add_u32 v29, v29, v28")
        a("v_lshl_add_u32 v30, v26, 2, v29")
        a("v_mul_u32_u24 v30, 1280, v30")
        a("v_add_u32 v%d, v25, v30" % (216 + i5))
        a("v_add_u32 v30, v31, v29")
        a("v_mul_u32_u24 v30, 1280, v30")
        a("v_add_u32 v%d, v25, v30" % (221 + i5))
    a.wait_vm_all()
    a("s_barrier")
    a("s_cmp_lg_u32 s27, 0")
    a("s_cbranch_scc1 L_p2_ns")
    a("v_mov_b32 v24, 1")
    a("s_mov_b64 exec, 1")
    a("buffer_atomic_add v24, off, s[16:19], s37 offset:64")
    a.vm.pop()
    a("s_mov_b64 exec, -1")
    a.label("L_p2_ns")
    srd(a, 8, 76, 77, 819200)
    srd(a, 40, 70, 71, 819200)
    srd(a, 32, 80, 81, 2621440)
    a("s_lshl_b32 s22, s20, 2")
    a("s_add_u32 s22, s22, s27")
    a("s_mul_i32 s22, s22, 20480")
    for u in range(4):
        p2_dma(a, u)
    a("s_lshr_b32 s30, s20, 1")
    a("s_lshl_b32 s30, s30, 2")
    stamp(a, 11)
    poll1(a, "L_prb", 64, 8, 23, False)
    stamp(a, 12)
    def oloads(br):
        a("s_add_u32 s28, s22, 0x%x" % (WS_OB if br else WS_OA))
        for ks in range(20):
            a("buffer_load_dwordx4 %s, v4, s[12:15], s28 offen" % ar((0 if br else 80) + ks * 4), tag=("x", (0 if br else 20) + ks))
            a("s_add_u32 s28, s28, 1024")
    oloads(1)
    a("s_lshl_b32 s28, s20, 6")
    a("s_lshl_b32 s29, s27, 4")
    a("s_add_u32 s28, s28, s29")
    a("v_add_u32 v16, s28, v3")
    a("v_lshlrev_b32 v17, 2, v16")
    a("s_mov_b32 s29, 0x%x" % WS_G)
    a("buffer_load_dword v18, v17, s[12:15], s29 offen", tag="g")
    a("v_lshrrev_b32 v24, 2, v3")
    a("v_and_b32 v25, 3, v3")
    a("v_lshl_add_u32 v24, v2, 2, v24")
    a("v_mul_u32_u24 v24, 160, v24")
    a("v_lshl_add_u32 v20, v25, 3, v24")
    a("v_add_u32 v21, 61440, v20")
    a("v_add_u32 v22, 61440, v21")
    ACB = 96; ACA = 116
    a.wait_vm(("dma2", 0))
    a("s_barrier")
    p2_dma(a, 4)
    for r in p2_reads(0) + p2_reads(1): a(r)
    for kk in range(40):
        a("s_waitcnt lgkmcnt(%d)" % (10 if kk < 39 else 0))
        if kk == 12:
            stamp(a, 13)
            poll1(a, "L_pra", 128, 8, 23, False)
            oloads(0)
        a.wait_vm(("x", kk))
        nx = kk + 2
        rd = []
        if nx < 40:
            if nx % 4 == 0:
                un = nx // 4
                a.wait_vm(("dma2", un)); a("s_barrier")
                if un + 4 < 10:
                    p2_dma(a, un + 4)
            rd = p2_reads(nx)
        acc0 = ACB if kk < 20 else ACA
        mf = ["%s %s, %s, %s, %s" % (MF, vr(acc0 + t * 4), vr(24 + (kk % 3) * 20 + t * 4), ar(kk * 4), "0" if kk % 20 == 0 else vr(acc0 + t * 4)) for t in range(5)]
        interleave(a, mf, rd)
    stamp(a, 14)
    a.wait_vm("g")
    a("v_mul_u32_u24 v16, 1280, v16")
    a("v_lshl_add_u32 v16, v2, 3, v16")
    a("v_sub_f32 v19, 1.0, v18")
    a("v_cvt_pk_bf16_f32 v19, v19, v19")
    a("v_lshlrev_b32 v19, 16, v19")
    for t in range(5):
        A0 = ACA + t * 4; B0 = ACB + t * 4
        for X in (A0, B0):
            a("v_cvt_pk_bf16_f32 v28, v%d, v%d" % (X, X + 1))
            a("v_cvt_pk_bf16_f32 v29, v%d, v%d" % (X + 2, X + 3))
            a("v_lshlrev_b32 v%d, 16, v28" % X)
            a("v_and_b32 v%d, 0xffff0000, v28" % (X + 1))
            a("v_lshlrev_b32 v%d, 16, v29" % (X + 2))
            a("v_and_b32 v%d, 0xffff0000, v29" % (X + 3))
            mul = 18 if X == A0 else 19
            for r in range(4):
                a("v_mul_f32 v%d, v%d, v%d" % (X + r, X + r, mul))
            a("v_cvt_pk_bf16_f32 v28, v%d, v%d" % (X, X + 1))
            a("v_cvt_pk_bf16_f32 v29, v%d, v%d" % (X + 2, X + 3))
            a("v_lshlrev_b32 v%d, 16, v28" % X)
            a("v_and_b32 v%d, 0xffff0000, v28" % (X + 1))
            a("v_lshlrev_b32 v%d, 16, v29" % (X + 2))
            a("v_and_b32 v%d, 0xffff0000, v29" % (X + 3))
        for r in range(4):
            a("v_add_f32 v%d, v%d, v%d" % (A0 + r, A0 + r, B0 + r))
        a("v_cvt_pk_bf16_f32 v%d, v%d, v%d" % (B0, A0, A0 + 1))
        a("v_cvt_pk_bf16_f32 v%d, v%d, v%d" % (B0 + 1, A0 + 2, A0 + 3))
        a("buffer_store_dwordx2 %s, v16, s[32:35], s23 offen offset:%d" % (vr(B0, 2), t * 32))
    a("s_memrealtime s[90:91]")
    a("s_waitcnt lgkmcnt(0)")
    a("s_not_b32 s94, s94")
    a("v_mov_b32 v24, s94")
    a("v_mov_b32 v25, s90")
    a("s_mov_b64 exec, 1")
    a("buffer_atomic_umax v24, off, s[16:19], 0")
    a("buffer_atomic_umax v25, off, s[16:19], 0 offset:4")
    a("s_mov_b64 exec, -1")
    a.label("L_k1_end")
    a("s_endpgm")

HEADER = open("cdna_kernels/%s.s.ref" % NAME).read().split("; Override launch")[0]

def main(path):
    a = Asm()
    a.raw(HEADER.rstrip())
    a.raw("; @launch grid=(256,1,1) block=(256,1,1) lds=163840")
    a.raw('.amdgcn_target "amdgcn-amd-amdhsa--gfx950"\n.text')
    gen_k1(a)
    gen_k2(a)
    a.raw('.section .rodata,"a"')
    for k in (KN,):
        a.raw(""".p2align 6
.amdhsa_kernel %s
  .amdhsa_next_free_vgpr 512
  .amdhsa_next_free_sgpr 102
  .amdhsa_accum_offset 256
  .amdhsa_group_segment_fixed_size 0
  .amdhsa_kernarg_size 88
  .amdhsa_user_sgpr_count 2
  .amdhsa_user_sgpr_kernarg_segment_ptr 1
  .amdhsa_system_sgpr_workgroup_id_x 1
.end_amdhsa_kernel""" % k)
    open(path, "w").write(a.text())
    print("instructions:", a.n_ins)

if __name__ == "__main__":
    if len(sys.argv) > 2 and sys.argv[2] == "stamps":
        STAMPS = True
    main(sys.argv[1] if len(sys.argv) > 1 else "cdna_kernels/%s.s" % NAME)
```
